```python
import torch

def _softmax(x, axis=-1):
    return torch.softmax(x, dim=axis)
def _gelu(x):
    return torch.nn.functional.gelu(x, approximate="tanh")
def _silu(x):
    return torch.nn.functional.silu(x)
def _sigmoid(x):
    return torch.sigmoid(x)
def _layernorm(x, axis=-1, eps=1e-5):
    m = x.mean(dim=axis, keepdim=True)
    v = x.var(dim=axis, keepdim=True, unbiased=False)
    return (x - m) / torch.sqrt(v + eps)
def _scatter_add(tgt, idx, src, axis=0):
    return tgt.clone().index_add_(axis, idx, src)
def _segment_sum(src, seg, n):
    out = torch.zeros((n,) + src.shape[1:], dtype=src.dtype)
    return out.index_add_(0, seg, src)
def _pad(x, pw):
    flat = tuple(v for pair in reversed(pw) for v in pair)
    return torch.nn.functional.pad(x, flat)

kernel_name = 'interleave_layers__spectral_fnet__dense_activation_relu__prompt'

def setup_inputs():

    _w = (lambda a: (lambda t: t.to(torch.bfloat16) if t.is_floating_point() else t)(torch.as_tensor(a)))
    def _A_setup():
        B, S, D = 1, 2048, 576
        ns = torch.arange(S)[:, None] * torch.arange(S)[None, :]
        nd = torch.arange(D)[:, None] * torch.arange(D)[None, :]
        Ws_re = torch.cos(-2.0 * torch.pi * ns / S).to(float)
        Ws_im = torch.sin(-2.0 * torch.pi * ns / S).to(float)
        Wd_re = torch.cos(-2.0 * torch.pi * nd / D).to(float)
        Wd_im = torch.sin(-2.0 * torch.pi * nd / D).to(float)
        return {
            "x": _w((lambda *s: torch.randn(*s, dtype=torch.bfloat16) * 0.05)(B, S, D)),
            "dft_seq_re": _w(Ws_re),
            "dft_seq_im": _w(Ws_im),
            "dft_hid_re": _w(Wd_re),
            "dft_hid_im": _w(Wd_im),
        }
    _A_in = _A_setup()

    def _B_setup():
        B, S, D, Dff = 1, 2048, 576, 4608
        return {
            "x": _w((lambda *s: torch.randn(*s, dtype=torch.bfloat16) * 0.05)(B, S, D)),
            "w1": _w((lambda *s: torch.randn(*s, dtype=torch.bfloat16) * 1.6)(D, Dff)),
            "w2": _w((lambda *s: torch.randn(*s, dtype=torch.bfloat16) * 1.6)(Dff, D)),
        }
    _B_in = _B_setup()

    return {
        "A_x": _A_in["x"],
        "A_dft_seq_re": _A_in["dft_seq_re"],
        "A_dft_seq_im": _A_in["dft_seq_im"],
        "A_dft_hid_re": _A_in["dft_hid_re"],
        "A_dft_hid_im": _A_in["dft_hid_im"],
        "B_x": _B_in["x"],
        "B_w1": _B_in["w1"],
        "B_w2": _B_in["w2"],
    }

def reference(A_x, A_dft_seq_re, A_dft_seq_im, A_dft_hid_re, A_dft_hid_im, B_x, B_w1, B_w2):
    def _A_ref(x, dft_seq_re, dft_seq_im, dft_hid_re, dft_hid_im):
        a = torch.einsum("bsd,ed->bse", x, dft_hid_re)
        b = torch.einsum("bsd,ed->bse", x, dft_hid_im)
        y = torch.einsum("ts,bse->bte", dft_seq_re, a) - torch.einsum("ts,bse->bte", dft_seq_im, b)
        return y

    def _B_ref(x, w1, w2):
        h = torch.einsum("bsd,df->bsf", x, w1)
        zero = torch.zeros_like(h)
        h = torch.maximum(h, zero)
        return torch.einsum("bsf,fd->bsd", h, w2)

    x = A_x
    x = x + _A_ref(_layernorm(x, axis=-1), A_dft_seq_re, A_dft_seq_im, A_dft_hid_re, A_dft_hid_im)
    x = x + _B_ref(_layernorm(x, axis=-1), B_w1, B_w2)
    x = x + _A_ref(_layernorm(x, axis=-1), A_dft_seq_re, A_dft_seq_im, A_dft_hid_re, A_dft_hid_im)
    x = x + _B_ref(_layernorm(x, axis=-1), B_w1, B_w2)
    return x
```

```python
import re
NAME = "interleave_layers__spectral_fnet__dense_activation_relu__prompt"
HDR = """; Kernarg layout (88 bytes, ptrs only, base s[0:1]):
"""
STAMP_OFF = 0x0F000000
TRANS = ("v_exp_f32","v_log_f32","v_rcp_f32","v_rsq_f32","v_sqrt_f32","v_sin_f32","v_cos_f32")
def regs(tok):
    tok=tok.strip()
    if tok.startswith("-"): tok=tok[1:]
    m=re.fullmatch(r"([vas])(\d+)",tok)
    if m: return [(m.group(1),int(m.group(2)))]
    m=re.fullmatch(r"([vas])\[(\d+):(\d+)\]",tok)
    if m: return [(m.group(1),i) for i in range(int(m.group(2)),int(m.group(3))+1)]
    if tok=="vcc": return [("s",106),("s",107)]
    return []
def parse(line):
    line=line.split(";")[0].strip()
    sp=line.split(None,1)
    op=sp[0]; rest=sp[1] if len(sp)>1 else ""
    ops=[o.strip() for o in rest.split(",")]
    ops=[o.split()[0] if o else o for o in ops]
    R=[regs(o) for o in ops]
    d=[];s=[];cls="s";C=[]
    if op.startswith("v_mfma"):
        cls="m"; d=R[0]; s=R[1]+R[2]; C=R[3]
    elif op.startswith("v_"):
        cls="v"
        d=R[0]; s=sum(R[1:],[])
        if "swap" in op: d=R[0]+R[1]; s=list(d)
        if op.startswith(("v_fmac","v_dot2c")): s=s+R[0]
        if op.startswith("v_cndmask") and len(ops)==3: s=s+regs("vcc")
    elif op.startswith("buffer_load"):
        cls="vm"; d=R[0]; s=sum(R[1:],[])
    elif op.startswith("buffer_store"):
        cls="vm"; s=sum(R,[]); C=R[0] if ("x3" in op or "x4" in op) else []
    elif op.startswith("ds_read"):
        cls="ds"; d=R[0]; s=R[1]
    elif op.startswith("ds_"):
        cls="ds"; s=sum(R,[])
    return op,cls,d,s,C
class Kern:
    def __init__(self, name, grid, block, lds, vgpr, agpr=0, sgpr=96):
        self.name=name; self.grid=grid; self.block=block; self.lds=lds
        self.vgpr=vgpr; self.agpr=agpr; self.sgpr=sgpr; self.lines=[]
        self.nlab=0; self.hist=[]; self.nops=0; self.noplog=[]
        self.vmq=[]; self.vmdone=0; self.lgq=[]; self.lgdone=0
    def need(self, op,cls,d,s,C):
        need=0; dist=0
        ds=set(d); ss=set(s); cs=set(C)
        for (pop,pcls,pd,ps,pC,w) in reversed(self.hist):
            if dist>=12: break
            pds=set(pd); n=0
            if pcls=="v":
                pv={r for r in pds if r[0]!="s"}; psg={r for r in pds if r[0]=="s"}
                if cls=="m" and pv&(ss|cs): n=2
                if op.startswith(("v_readfirstlane","v_readlane")) and pv&ss: n=max(n,1)
                if "permlane" in op and pv&ss: n=max(n,2)
                if cls=="v" and psg&ss: n=max(n,2)
                if cls=="vm" and psg&ss: n=max(n,5)
                if pop.startswith(TRANS) and cls=="v" and not op.startswith(TRANS) and pv&ss: n=max(n,1)
                if pop.startswith("v_dot") and (pv&(ss|ds)): n=max(n,3)
            if pcls=="m":
                big = "32x32" in pop
                if cls=="m":
                    if pds&ss: n=12 if big else 8
                    if pds&cs and not (pd==C): n=max(n,10 if big else 6)
                    if pds&ds and not (pd==C): n=max(n,12 if big else 8)
                elif cls in("v","vm","ds") and pds&(ss|ds): n=12 if big else 8
                if cls=="v" and set(pC)&ds: n=max(n,7 if big else 3)
            if pcls=="vm" and pop.startswith("buffer_store") and set(pC)&ds: n=max(n,2)
            need=max(need,n-dist)
            dist+=w
        return need
    def __call__(self, text):
        for l in text.split("\n"):
            l=l.strip()
            if not l: continue
            if l.endswith(":"):
                self.lines.append(l); continue
            op,cls,d,s,C=parse(l)
            n=self.need(op,cls,d,s,C)
            if n>0:
                self.lines.append(f"    s_nop {n-1}"); self.hist.append(("s_nop","s",[],[],[],n)); self.nops+=1
                self.noplog.append((len(self.lines),n,l))
            w=1
            if op=="s_nop": w=int(l.split()[1])+1
            self.lines.append("    "+l); self.hist.append((op,cls,d,s,C,w))
            if len(self.hist)>40: self.hist=self.hist[-24:]
    def vm(self, text, tag=None):
        self(text); self.vmq.append(tag); assert len(self.vmq)-self.vmdone<=63, "vmcnt overflow"
    def vm_out(self): return len(self.vmq)-self.vmdone
    def vm_wait(self, tag):
        i=len(self.vmq)-1-self.vmq[::-1].index(tag)
        if i<self.vmdone: return None
        n=len(self.vmq)-1-i; self.vmdone=i+1
        return n
    def lg(self, text, tag=None):
        self(text); self.lgq.append(tag); assert len(self.lgq)-self.lgdone<=15, "lgkmcnt overflow"
    def lg_wait(self, tag):
        i=len(self.lgq)-1-self.lgq[::-1].index(tag)
        if i<self.lgdone: return None
        n=len(self.lgq)-1-i; self.lgdone=i+1
        return n
    def wait(self, vtag=None, ltag=None):
        a=self.vm_wait(vtag) if vtag is not None else None
        b=self.lg_wait(ltag) if ltag is not None else None
        s=[]
        if a is not None: s.append(f"vmcnt({a})")
        if b is not None: s.append(f"lgkmcnt({b})")
        if s: self("s_waitcnt "+" ".join(s))
    def wait_all_lg(self):
        if self.lgdone<len(self.lgq): self("s_waitcnt lgkmcnt(0)")
        self.lgdone=len(self.lgq)
    def wait_all_vm(self):
        if self.vmdone<len(self.vmq): self("s_waitcnt vmcnt(0)")
        self.vmdone=len(self.vmq)
    def label(self, base="L"):
        self.nlab+=1
        return f"{self.name}_{base}{self.nlab}"
    def srd(self, d, ptr, nbytes, off=None, soff=None):
        self(f"s_add_u32 s{d}, s{ptr}, {hex(off or 0)}")
        self(f"s_addc_u32 s{d+1}, s{ptr+1}, 0")
        if soff is not None:
            self(f"s_add_u32 s{d}, s{d}, s{soff}")
            self(f"s_addc_u32 s{d+1}, s{d+1}, 0")
        self(f"s_and_b32 s{d+1}, s{d+1}, 0xffff")
        self(f"s_mov_b32 s{d+2}, {hex(nbytes)}")
        self(f"s_mov_b32 s{d+3}, 0x20000")
    def text(self):
        acc = (self.vgpr+3)//4*4
        nfv = acc+self.agpr if self.agpr else self.vgpr
        body = "\n".join(self.lines)
        t = f""".text
.globl {self.name}
.p2align 8
.type {self.name},@function
{self.name}:
{body}
"""
        kd = f""".section .rodata,"a"
.p2align 6
.amdhsa_kernel {self.name}
  .amdhsa_next_free_vgpr {nfv}
  .amdhsa_next_free_sgpr {self.sgpr}
  .amdhsa_accum_offset {acc}
  .amdhsa_group_segment_fixed_size 0
  .amdhsa_kernarg_size 88
  .amdhsa_user_sgpr_count 2
  .amdhsa_user_sgpr_kernarg_segment_ptr 1
  .amdhsa_system_sgpr_workgroup_id_x 1
  .amdhsa_float_denorm_mode_32 3
  .amdhsa_float_denorm_mode_16_64 3
.end_amdhsa_kernel
"""
        return t+kd
def build(launches, kerns, hdr=HDR):
    out = hdr
    for k in launches:
        out += f"; @launch kernel={k.name} grid=({k.grid},1,1) block=({k.block},1,1) lds={k.lds}\n"
    out += '.amdgcn_target "amdgcn-amd-amdhsa--gfx950"\n'
    seen=[]
    for k in kerns:
        if k.name in seen: continue
        seen.append(k.name)
        out += k.text()
    return out
def stamp_begin(k, s_t=92):
    k(f"s_memrealtime s[{s_t}:{s_t+1}]")
def stamp_end(k, kidx, s_ws, s_wg, nwg=512, s_t=92, sd=88, v=0, vt=1):
    k(f"s_waitcnt vmcnt(0) lgkmcnt(0)")
    k(f"s_memrealtime s[{s_t+2}:{s_t+3}]")
    k.srd(sd, s_ws, 0x100000, STAMP_OFF)
    k(f"s_waitcnt lgkmcnt(0)")
    k(f"v_mov_b32 v{vt+1}, s{s_t}")
    k(f"v_mov_b32 v{vt+2}, s{s_t+1}")
    k(f"v_mov_b32 v{vt+3}, s{s_t+2}")
    k(f"v_mov_b32 v{vt+4}, s{s_t+3}")
    k(f"s_lshl_b32 s{s_t}, s{s_wg}, 4")
    k(f"s_add_u32 s{s_t}, s{s_t}, {kidx*nwg*16}")
    k(f"v_mov_b32 v{vt}, s{s_t}")
    k(f"v_cmp_eq_u32 vcc, 0, v{v}")
    k(f"s_and_saveexec_b64 s[{s_t+2}:{s_t+3}], vcc")
    l=k.label("st")
    k(f"s_cbranch_execz {l}")
    assert (vt+1)%2==0
    k(f"buffer_store_dwordx4 v[{vt+1}:{vt+4}], v{vt}, s[{sd}:{sd+3}], 0 offen")
    k(f"{l}:")
    k(f"s_mov_b64 exec, -1")
```

```python
import sys, struct
from asmlib import *
WP=0x0; VP=0x0B00000; FP=0x1000000; XP=0x1100000; PP=0x1400000
XSZ=2359296
STAMPS = "--stamps" in sys.argv
def f2u(x): return struct.unpack("<I",struct.pack("<f",x))[0]
INV576=hex(f2u(1.0/576)); EPS=hex(f2u(1e-5))
MF="v_mfma_f32_16x16x32_bf16"
def vr(b,n=4): return f"v[{b}:{b+n-1}]" if n>1 else f"v{b}"
def ar(b,n=4): return f"a[{b}:{b+n-1}]"

def ln_scalars(k, S, Q, T, RS, NM, M=None):
    k(f"v_mul_f32 v{S}, {INV576}, v{S}")
    k(f"v_mul_f32 v{Q}, {INV576}, v{Q}")
    k(f"v_fma_f32 v{Q}, -v{S}, v{S}, v{Q}")
    k(f"v_max_f32 v{Q}, 0, v{Q}")
    k(f"v_cvt_pk_bf16_f32 v{T}, v{S}, v{Q}")
    k(f"v_lshlrev_b32 v{S}, 16, v{T}")
    k(f"v_and_b32 v{Q}, 0xffff0000, v{T}")
    k(f"v_add_f32 v{Q}, {EPS}, v{Q}")
    k(f"v_cvt_pk_bf16_f32 v{T}, v{Q}, v{Q}")
    k(f"v_and_b32 v{Q}, 0xffff0000, v{T}")
    k(f"v_sqrt_f32 v{Q}, v{Q}")
    k(f"v_cvt_pk_bf16_f32 v{T}, v{Q}, v{Q}")
    k(f"v_and_b32 v{Q}, 0xffff0000, v{T}")
    k(f"v_rcp_f32 v{RS}, v{Q}")
    if M is not None: k(f"v_mov_b32 v{M}, v{S}")
    k(f"v_mul_f32 v{NM}, -v{S}, v{RS}")

def gen_KF(name, kidx, store_mod=""):
    STAT=147456; PRIV=STAT+2048
    k=Kern(name,256,256,PRIV+2048,vgpr=256,agpr=256)
    k("s_cmp_ge_u32 s2, 256"); k(f"s_cbranch_scc1 {name}_done")
    if STAMPS: stamp_begin(k)
    k("s_load_dwordx2 s[4:5], s[0:1], 80")
    k("v_lshrrev_b32 v2, 6, v0"); k("v_and_b32 v14, 63, v0")
    k("v_readfirstlane_b32 s6, v2")
    k("v_lshlrev_b32 v1, 4, v14")
    k("s_and_b32 s7, s2, 7"); k("s_lshr_b32 s8, s2, 3")
    for n in range(8): k(f"s_mov_b32 s{40+n}, {n*4096}")
    k("s_lshl_b32 s9, s7, 2"); k("s_add_u32 s9, s9, s6"); k("s_mul_i32 s9, s9, 331776")
    k("s_mul_i32 s10, s8, 147456")
    k("s_lshl_b32 s11, s8, 14")
    k("s_mul_i32 s32, s8, 73728")
    k(f"s_mul_i32 s33, s7, {XSZ}"); k("s_add_u32 s33, s33, s32")
    k("s_lshl_b32 s34, s6, 14"); k("v_add_u32 v2, s34, v1")
    k("s_and_b32 s34, s6, 1"); k("s_lshl_b32 s34, s34, 3"); k("s_lshr_b32 s35, s6, 1"); k("s_lshl_b32 s35, s35, 12")
    k("s_add_u32 s34, s34, s35"); k("s_add_u32 s34, s34, 65536"); k("v_add_u32 v3, s34, v1")
    k("s_lshl_b32 s34, s6, 15"); k("v_add_u32 v8, s34, v1")
    k("s_add_u32 s34, s6, 32"); k("s_lshl_b32 s34, s34, 12"); k("v_add_u32 v9, s34, v1")
    k("s_waitcnt lgkmcnt(0)")
    k.srd(24,4,73728,XP,32);
    X1=160
    for p in range(4):
        for jt in range(4):
            k.vm(f"buffer_load_dwordx4 {vr(X1+(p*4+jt)*4)}, v2, s[24:27], s{40+p} offen offset:{jt*1024}", "X")
    for jt in range(4):
        k.vm(f"buffer_load_dwordx2 {vr(X1+64+jt*2,2)}, v3, s[24:27], 0 offen offset:{jt*1024}", "X")
    k.srd(20,4,16384,FP,11)
    FB=192
    for jt in range(4):
        for ks in range(4):
            k.vm(f"buffer_load_dwordx4 {ar(FB+(jt*4+ks)*4)}, v1, s[20:23], s{40+jt} offen offset:{ks*1024}", "F")
    k.srd(16,4,147456,VP,10)
    k.srd(12,4,331776,WP,9)
    k("s_mov_b32 s36, 0")
    RING=48; NZ=360
    st={"next":0,"free":RING}
    def issue_one():
        z=st["next"]
        if z>=NZ or z>=st["free"] or k.vm_out()>=62: return False
        slot=(z%RING)*4
        if z<36:
            n,ks=z//4,z%4
            if n<8: k.vm(f"buffer_load_dwordx4 {ar(slot)}, v8, s[16:19], s{40+n} offen offset:{ks*1024}", ("Z",z))
            else:   k.vm(f"buffer_load_dwordx4 {ar(slot)}, v9, s[16:19], 0 offen offset:{ks*1024}", ("Z",z))
        else:
            m=z-36
            if m%4==0 and m>0: k("s_add_u32 s36, s36, 4096")
            k.vm(f"buffer_load_dwordx4 {ar(slot)}, v1, s[12:15], s36 offen offset:{(m%4)*1024}", ("Z",z))
        st["next"]+=1
        return True
    while issue_one(): pass
    k.srd(28,4,73728,PP,33)
    k("v_add_u32 v4, 73728, v2"); k("v_add_u32 v5, 73728, v3")
    k("v_add_u32 v6, 65536, v1"); k("v_add_u32 v7, 131072, v1")
    k("s_lshl_b32 s34, s6, 3"); k(f"s_add_u32 s34, s34, {STAT}")
    k("v_lshlrev_b32 v11, 5, v14"); k("v_add_u32 v10, s34, v11"); k(f"v_add_u32 v11, {STAT}, v11")
    k("s_lshl_b32 s34, s6, 9"); k(f"s_add_u32 s34, s34, {PRIV}")
    k("v_lshl_add_u32 v12, v14, 3, s34"); k("v_and_b32 v13, 15, v14"); k("v_lshl_add_u32 v13, v13, 3, s34")
    k("s_cmp_eq_u32 s7, 0"); k("s_cselect_b32 s38, 0x10000, 0"); k("s_cselect_b32 s39, 0xffff0000, 0")
    SQ=232
    for i in range(16): k(f"v_mov_b32 v{SQ+i}, 0")
    def acc(n,jt): return 16+n*16+jt*4
    def x1reg(n,jt): return X1+((n//2)*4+jt)*4+(n%2)*2 if n<8 else X1+64+jt*2
    k.wait("X")
    while issue_one(): pass
    for n in range(9):
        for jt in range(4):
            a=acc(n,jt); x=x1reg(n,jt)
            for h in range(2):
                k(f"v_lshlrev_b32 v{a+2*h}, 16, v{x+h}"); k(f"v_and_b32 v{a+2*h+1}, 0xffff0000, v{x+h}")
    def stat_tasks(n):
        t=[]
        for jt in range(4):
            a=acc(n,jt); x=x1reg(n,jt); S=SQ+jt*4; Q=S+2
            for h in range(2):
                t.append(f"v_pk_add_f32 {vr(S,2)}, {vr(S,2)}, {vr(a+2*h,2)}")
                t.append(f"v_pk_fma_f32 {vr(Q,2)}, {vr(a+2*h,2)}, {vr(a+2*h,2)}, {vr(Q,2)}")
                t.append(f"v_cvt_pk_bf16_f32 v{x+h}, v{a+2*h}, v{a+2*h+1}")
        return t
    fill=[]
    for n in range(9):
        for ks in range(4):
            z=4*n+ks
            k.wait(("Z",z))
            for jt in range(4):
                k(f"{MF} {vr(acc(n,jt))}, {ar((z%RING)*4)}, {ar(FB+(jt*4+ks)*4)}, {vr(acc(n,jt))}")
                if ks>0 or jt>=2:
                    for _ in range(2):
                        if fill: k(fill.pop(0))
            st["free"]=z+1+RING
            while issue_one(): pass
        assert not fill
        fill=stat_tasks(n)
    for t in fill: k(t)
    for jt in range(4):
        S=SQ+jt*4
        k(f"v_add_f32 v{S}, v{S}, v{S+1}"); k(f"v_add_f32 v{S+2}, v{S+2}, v{S+3}")
    for o in (0,2):
        k(f"v_permlane32_swap_b32 v{SQ+o}, v{SQ+8+o}"); k(f"v_permlane32_swap_b32 v{SQ+4+o}, v{SQ+12+o}")
    for o in (0,2):
        k(f"v_add_f32 v{SQ+o}, v{SQ+o}, v{SQ+8+o}"); k(f"v_add_f32 v{SQ+4+o}, v{SQ+4+o}, v{SQ+12+o}")
    for o in (0,2): k(f"v_permlane16_swap_b32 v{SQ+o}, v{SQ+4+o}")
    k(f"v_add_f32 v{SQ}, v{SQ}, v{SQ+4}"); k(f"v_add_f32 v{SQ+1}, v{SQ+2}, v{SQ+6}")
    k.lg(f"ds_write_b64 v10, {vr(SQ,2)}")
    k.wait_all_lg(); k("s_barrier")
    k.lg(f"ds_read_b128 {vr(SQ)}, v11"); k.lg(f"ds_read_b128 {vr(SQ+4)}, v11 offset:16")
    k.wait_all_lg()
    k(f"v_pk_add_f32 {vr(SQ,2)}, {vr(SQ,2)}, {vr(SQ+2,2)}"); k(f"v_pk_add_f32 {vr(SQ+4,2)}, {vr(SQ+4,2)}, {vr(SQ+6,2)}")
    k(f"v_pk_add_f32 {vr(SQ,2)}, {vr(SQ,2)}, {vr(SQ+4,2)}")
    ln_scalars(k,SQ,SQ+1,SQ+2,SQ+4,SQ+5)
    k.lg(f"ds_write_b64 v12, {vr(SQ+4,2)}")
    RN=248
    for jt in range(4): k.lg(f"ds_read_b64 {vr(RN+2*jt,2)}, v13 offset:{jt*128}", ("RN",jt))
    tq=[SQ,SQ+4,SQ+8,SQ+12]; ti=0
    for jt in range(4):
        k.wait(None,("RN",jt))
        for p in range(5):
            T=tq[ti%4]; ti+=1
            tiles=[2*p,2*p+1] if p<4 else [8]
            for n in tiles:
                for h in range(2):
                    a=acc(n,jt)+2*h
                    k(f"v_pk_fma_f32 {vr(a,2)}, {vr(a,2)}, {vr(RN+2*jt,2)}, {vr(RN+2*jt,2)} op_sel:[0,0,1] op_sel_hi:[1,0,1]")
            for i,n in enumerate(tiles):
                for h in range(2):
                    a=acc(n,jt)+2*h
                    k(f"v_cvt_pk_bf16_f32 v{T+2*i+h}, v{a}, v{a+1}")
            if len(k.lgq)-k.lgdone>=12: k.wait_all_lg()
            if p<4: k.lg(f"ds_write_b128 v2, {vr(T)} offset:{p*4096+jt*1024}")
            else:   k.lg(f"ds_write_b64 v3, {vr(T,2)} offset:{jt*1024}")
    k.wait_all_lg(); k("s_barrier")
    passes=[[0,1,2,3],[4,5,8],[6,7]]
    ordA=[x for x in range(18) if not (x<16 and x%4==3)]+[3,7,11,15]
    steps=[]; z=36
    for G in range(2):
        for pi,tiles in enumerate(passes):
            for i in range(18):
                kap = ordA[i] if (G==1 and pi==0) else i
                steps.append(dict(G=G,pi=pi,i=i,tiles=tiles,kap=kap,z=z)); z+=len(tiles)
    assert z==NZ
    def bread(s):
        if s>=len(steps): return []
        d=steps[s]; out=[]
        for jt in range(4):
            adr=d["G"]*73728+d["kap"]*4096+jt*1024
            base={0:1,1:6,2:7}[adr>>16]
            out.append(("lg",f"ds_read_b128 {ar(FB+(s%4)*16+jt*4)}, v{base} offset:{adr&0xffff}",("B",s)))
        return out
    tcount=[0]
    def tmp():
        tcount[0]+=1; return SQ+(tcount[0]%6)*4
    def epi(G,tiles):
        out=[]
        units=[]
        for n in tiles:
            if n==8: units.append([8])
            elif n%2==0: units.append([n,n+1])
        for u in units:
            for jt in range(4):
                T=tmp(); t=[]
                for i,n in enumerate(u):
                    for h in range(2):
                        a=acc(n,jt)+2*h
                        t.append(("v",f"v_cvt_pk_bf16_f32 v{T+2*i+h}, v{a}, v{a+1}",None))
                if G==0:
                    for i in range(2*len(u)): t.append(("v",f"v_pk_max_i16 v{T+i}, v{T+i}, 0",None))
                    if len(u)==2: t.append(("lg",f"ds_write_b128 v4, {vr(T)} offset:{(u[0]//2)*4096+jt*1024}","HW"))
                    else: t.append(("lg",f"ds_write_b64 v5, {vr(T,2)} offset:{jt*1024}","HW"))
                else:
                    if len(u)==2: t.append(("vm",f"buffer_store_dwordx4 {vr(T)}, v2, s[28:31], s{40+u[0]//2} offen offset:{jt*1024}{store_mod}","ST"))
                    else: t.append(("vm",f"buffer_store_dwordx2 {vr(T,2)}, v3, s[28:31], 0 offen offset:{jt*1024}{store_mod}","ST"))
                out+=t
        return out
    def init(tiles):
        out=[]
        for n in tiles:
            for jt in range(4):
                a=acc(n,jt); x=x1reg(n,jt)
                for h in range(2):
                    out.append(("v",f"v_mul_u32_u24 v{a+2*h}, s38, v{x+h}",None))
                    out.append(("v",f"v_and_b32 v{a+2*h+1}, s39, v{x+h}",None))
        return out
    win=[(19,35,epi(0,passes[0])+init(passes[0])),
         (37,50,epi(0,passes[1])),
         (55,62,epi(0,passes[2])),
         (63,71,init(passes[1])+init(passes[2])),
         (73,88,epi(1,passes[0])),
         (91,106,epi(1,passes[1]))]
    extra={s:[] for s in range(len(steps))}
    for a,b,t in win:
        n=b-a+1
        for i in range(n):
            extra[a+i]=t[len(t)*i//n:len(t)*(i+1)//n]
    def emit(t):
        if t[0]=="v": k(t[1])
        elif t[0]=="lg": k.lg(t[1],t[2])
        else: k.vm(t[1],t[2])
    for s in (0,1):
        for t in bread(s): emit(t)
    for s,d in enumerate(steps):
        if s in (52,64):
            k.wait_all_lg(); k("s_barrier")
        k.wait(("Z",d["z"]+len(d["tiles"])-1),("B",s))
        fl=bread(s+2)+extra[s]
        nm=4*len(d["tiles"]); cnt=0; done=0
        for ti,n in enumerate(d["tiles"]):
            z=d["z"]+ti
            for jt in range(4):
                C = "0" if (d["G"]==0 and d["i"]==0) else vr(acc(n,jt))
                k(f"{MF} {vr(acc(n,jt))}, {ar((z%RING)*4)}, {ar(FB+(s%4)*16+jt*4)}, {C}")
                cnt+=1
                if jt==3:
                    st["free"]=z+1+RING
                    issue_one()
                else:
                    tgt=(len(fl)*cnt+nm-1)//nm if cnt<nm-1 else len(fl)
                    while done<tgt: emit(fl[done]); done+=1
        assert done==len(fl)
    for t in epi(1,passes[2]): emit(t)
    if STAMPS: stamp_end(k,kidx,4,2)
    k(f"{name}_done:"); k("s_endpgm")
    return k

def gen_KA(name, kidx, first):
    EFR=0; OFR=18432; GFR=36864; STAT=GFR+4096; L288=STAT+1024
    grid=256 if first else 192
    k=Kern(name,grid,384,L288+128,vgpr=240)
    k(f"s_cmp_ge_u32 s2, {grid}"); k(f"s_cbranch_scc1 {name}_done")
    if STAMPS: stamp_begin(k)
    k("s_load_dwordx2 s[4:5], s[0:1], 80")
    k("s_load_dwordx4 s[48:51], s[0:1], 24")
    if first:
        k("s_load_dwordx2 s[52:53], s[0:1], 0")
        k("s_load_dwordx4 s[56:59], s[0:1], 8")
        k("s_load_dwordx4 s[60:63], s[0:1], 48")
    k("v_lshrrev_b32 v2, 6, v0"); k("v_and_b32 v14, 63, v0")
    k("v_readfirstlane_b32 s6, v2")
    k("v_lshlrev_b32 v1, 4, v14")
    k("v_and_b32 v12, 15, v14"); k("v_lshrrev_b32 v13, 4, v14")
    k("s_and_b32 s7, s2, 7"); k("s_lshr_b32 s8, s2, 3")
    k("s_and_b32 s9, s8, 7"); k("s_lshl_b32 s10, s7, 3"); k("s_add_u32 s9, s9, s10")
    k("s_lshr_b32 s10, s8, 3")
    k("s_and_b32 s11, s6, 1"); k("s_lshr_b32 s32, s6, 1")
    k("s_and_b32 s33, s9, 31"); k("s_lshr_b32 s34, s9, 5")
    k("s_lshl_b32 s34, s34, 1"); k("s_add_u32 s34, s34, s11")
    k("s_mul_i32 s35, s33, 73728"); k("s_mul_i32 s36, s32, 12288"); k("s_add_u32 s35, s35, s36")
    k("s_lshl_b32 s36, s34, 10"); k("s_add_u32 s35, s35, s36")
    for i in range(3):
        k(f"s_add_u32 s36, s35, {i*4096}"); k(f"v_add_u32 v{2+i}, s36, v1")
        k(f"v_add_u32 v{5+i}, {9*4096}, v{2+i}")
    XA=16; B0=64; B1=128; DF=128
    def dft_loads():
        k("s_mul_i32 s36, s10, 3"); k("s_add_u32 s36, s36, s32"); k("s_lshl_b32 s36, s36, 5")
        k("s_lshl_b32 s37, s11, 2"); k("s_add_u32 s36, s36, s37")
        k("v_lshrrev_b32 v8, 2, v12"); k("v_lshlrev_b32 v8, 3, v8"); k("v_and_b32 v9, 3, v12")
        k("v_add3_u32 v8, v8, v9, s36"); k("v_mul_u32_u24 v8, 1152, v8"); k("v_lshl_add_u32 v8, v13, 4, v8")
        k.srd(12,48,663552); k.srd(16,50,663552)
        for kp in range(9): k.vm(f"buffer_load_dwordx4 {vr(DF+4*kp)}, v8, s[12:15], 0 offen offset:{kp*64}","D")
        for kp in range(9): k.vm(f"buffer_load_dwordx4 {vr(DF+36+4*kp)}, v8, s[16:19], 0 offen offset:{kp*64}","D")
    def gfrag():
        T=216
        k("s_lshl_b32 s36, s11, 4"); k(f"v_add_u32 v{T+8}, s36, v12")
        k("s_and_b32 s36, s32, 1"); k("s_mul_i32 s36, s36, 0xbe800000")
        k(f"v_lshlrev_b32 v{T+9}, 2, v13")
        k(f"s_mov_b32 s37, {hex(f2u(1/32))}")
        for q in range(8):
            k(f"v_add_u32 v{T+q}, {16*(q//4)+q%4}, v{T+9}")
            k(f"v_mul_u32_u24 v{T+q}, v{T+q}, v{T+8}")
            k(f"v_and_b32 v{T+q}, 31, v{T+q}")
            k(f"v_cvt_f32_u32 v{T+q}, v{T+q}")
            k(f"v_mul_f32 v{T+q}, s37, v{T+q}")
            k(f"v_add_f32 v{T+q}, s36, v{T+q}")
            k(f"v_cos_f32 v{T+q}, v{T+q}")
        for q in range(4): k(f"v_cvt_pk_bf16_f32 v{T+12+q}, v{T+2*q}, v{T+2*q+1}")
        k("s_and_b32 s36, s6, 3"); k("s_lshl_b32 s36, s36, 10"); k(f"v_add_u32 v{T+8}, s36, v1")
        k.lg(f"ds_write_b128 v{T+8}, {vr(T+12)} offset:{GFR}")
    k("s_waitcnt lgkmcnt(0)")
    if not first:
        k.srd(20,4,8*XSZ,PP)
        for c in range(8): k(f"s_mov_b32 s{40+c}, {c*XSZ}")
        def unit_loads(i,buf):
            for c in range(8):
                k.vm(f"buffer_load_dwordx4 {vr(buf+c*8)}, v{2+i}, s[20:23], s{40+c} offen",("U",i,c))
                k.vm(f"buffer_load_dwordx4 {vr(buf+c*8+4)}, v{5+i}, s[20:23], s{40+c} offen",("U",i,c))
        def unit_sum(i,buf):
            for c in range(8):
                k.wait(("U",i,c))
                for d in range(8):
                    a=XA+16*i+2*d; x=buf+c*8+d
                    if c==0:
                        k(f"v_lshlrev_b32 v{a}, 16, v{x}"); k(f"v_and_b32 v{a+1}, 0xffff0000, v{x}")
                    else:
                        T=216+2*(d%4)
                        k(f"v_lshlrev_b32 v{T}, 16, v{x}"); k(f"v_and_b32 v{T+1}, 0xffff0000, v{x}")
                        k(f"v_pk_add_f32 {vr(a,2)}, {vr(a,2)}, {vr(T,2)}")
        unit_loads(0,B0); unit_loads(1,B1)
        gfrag()
        unit_sum(0,B0); unit_loads(2,B0); unit_sum(1,B1); dft_loads(); unit_sum(2,B0)
    else:
        LA=k.label("noA")
        k("s_cmp_ge_u32 s8, 24"); k(f"s_cbranch_scc1 {LA}")
        k.srd(20,52,XSZ)
        k("s_lshl_b32 s36, s11, 4"); k("v_add_u32 v8, s36, v12"); k("v_lshl_add_u32 v8, v8, 6, s9")
        k("v_mul_u32_u24 v8, 1152, v8")
        k("s_mul_i32 s36, s32, 192")
        k("v_lshl_add_u32 v9, v13, 4, s36")
        k("v_add_u32 v10, v8, v9")
        k("v_sub_u32 v11, v8, v9"); k(f"v_add_u32 v11, {1136-128}, v11")
        for i in range(3):
            k.vm(f"buffer_load_dwordx4 {vr(B0+12*i)}, v10, s[20:23], 0 offen offset:{64*i}","U")
            k.vm(f"buffer_load_dwordx4 {vr(B0+12*i+4)}, v11, s[20:23], 0 offen offset:{128-64*i}","U")
        k("v_cmp_eq_u32 vcc, 0, v9")
        k(f"v_add_u32 v9, {128+16}, v11"); k("v_add_u32 v10, 576, v8"); k("v_cndmask_b32 v9, v9, v10, vcc")
        k.vm(f"buffer_load_dword v{B0+8}, v9, s[20:23], 0 offen","U")
        for i in (1,2): k.vm(f"buffer_load_dword v{B0+12*i+8}, v11, s[20:23], 0 offen offset:{128-64*i+16}","U")
        dft_loads()
        k(f"{LA}:")
        k.vmq=[]; k.vmdone=0
        PR=B0+36
        PR=200
        gfrag(); k.wait_all_lg()
        k("s_mul_i32 s64, s8, 6"); k("s_add_u32 s64, s64, s6")
        k("v_lshrrev_b32 v9, 2, v12"); k("v_and_b32 v10, 3, v12")
        LW2=k.label("w2"); LF=k.label("f"); LS1=k.label("s1done"); LUP=k.label("w2up")
        def dest_offsets(vK, vKs, vKsA, perlane):
            t=PR
            k(f"v_and_b32 v{t}, 3, v{vK}")
            k(f"v_lshrrev_b32 v{t+1}, 2, v{vK}")
            k(f"v_lshlrev_b32 v{t+2}, 2, v{vKsA}"); k(f"v_lshl_add_u32 v{t+2}, v{t}, 1, v{t+2}")
            k(f"v_mul_u32_u24 v{t+3}, 3, v{vKs}"); k(f"v_add_u32 v{t+3}, 72, v{t+3}")
            k(f"v_lshlrev_b32 v{t+4}, 1, v{vKs}"); k(f"v_add_u32 v{t+4}, 126, v{t+4}")
            k(f"v_cmp_eq_u32 vcc, 2, v{t}"); k(f"v_cndmask_b32 v{t+2}, v{t+2}, v{t+3}, vcc")
            k(f"v_cmp_eq_u32 vcc, 3, v{t}"); k(f"v_cndmask_b32 v{t+2}, v{t+2}, v{t+4}, vcc")
            k(f"v_add_u32 v{t+3}, 2, v{t+3}"); k(f"v_lshlrev_b32 v{t}, 1, v{t}")
            k(f"v_cmp_le_u32 vcc, 16, v{vK}")
            k(f"v_cndmask_b32 v{t+2}, v{t+2}, v{t+3}, vcc"); k(f"v_cndmask_b32 v{t+1}, v{t+1}, v{t}, vcc")
            k(f"v_mov_b32 v{t+3}, 1024"); k(f"v_mov_b32 v{t+4}, {324*1024}"); k(f"v_cndmask_b32 v{t+3}, v{t+3}, v{t+4}, vcc")
            k(f"v_mul_u32_u24 v{t+1}, 324, v{t+1}"); k(f"v_add3_u32 v{t+2}, v{t+2}, v{t+1}, v{perlane}")
            k(f"v_lshlrev_b32 v{t+2}, 10, v{t+2}")
            k(f"v_lshl_add_u32 v{t+2}, v13, 8, v{t+2}"); k(f"v_lshl_add_u32 v15, v10, 6, v{t+2}")
            k(f"v_add_u32 v11, v15, v{t+3}")
        k("s_cmp_ge_u32 s64, 81"); k(f"s_cbranch_scc1 {LW2}")
        k("s_mul_i32 s65, s64, 7282"); k("s_lshr_b32 s65, s65, 16"); k("s_mul_i32 s66, s65, 9"); k("s_sub_u32 s66, s64, s66")
        t=PR+8
        k(f"v_and_b32 v{t}, 1, v9"); k("s_lshl_b32 s65, s65, 1"); k(f"v_add_u32 v{t}, s65, v{t}")
        k(f"v_lshrrev_b32 v{t+1}, 1, v9"); k("s_lshl_b32 s66, s66, 1"); k(f"v_add_u32 v{t+1}, s66, v{t+1}")
        k("s_mul_i32 s67, s7, 1296"); k(f"v_mov_b32 v{t+2}, s67")
        dest_offsets(t,t+1,t+1,t+2)
        k.srd(24,60,5308416)
        k("s_mul_i32 s67, s7, 1152")
        k(f"v_lshl_add_u32 v{t+2}, v{t}, 6, s67"); k(f"v_lshl_add_u32 v8, v10, 4, v{t+2}")
        k(f"v_lshlrev_b32 v{t+1}, 5, v{t+1}"); k(f"v_lshl_add_u32 v9, v13, 3, v{t+1}")
        k("s_movk_i32 s67, 9216")
        AD=PR+32
        for q in range(8):
            k(f"v_add_u32 v{AD+q}, {q}, v9"); k(f"v_sub_u32 v10, 864, v{AD+q}")
            k(f"v_cmp_lt_u32 vcc, 288, v{AD+q}"); k(f"v_cndmask_b32 v{AD+q}, v{AD+q}, v10, vcc")
            k(f"v_mad_u32_u24 v{AD+q}, v{AD+q}, s67, v8")
        for q in range(8): k(f"buffer_load_dwordx4 {vr(PR+4*q)}, v{AD+q}, s[24:27], 0 offen")
        k("s_waitcnt vmcnt(8)"); k(f"s_branch {LS1}")
        k(f"{LW2}:")
        k("s_cmp_ge_u32 s64, 162"); k(f"s_cbranch_scc1 {LF}")
        k("s_sub_u32 s65, s64, 81")
        k("s_mul_i32 s66, s65, 3641"); k("s_lshr_b32 s66, s66, 16")
        k("s_mul_i32 s67, s66, 18"); k("s_sub_u32 s67, s65, s67")
        k("s_and_b32 s68, s7, 1"); k("s_mul_i32 s69, s68, 5"); k("s_add_u32 s66, s66, s69")
        k("s_sub_u32 s69, s65, 72"); k("s_lshl_b32 s69, s69, 1"); k("s_add_u32 s69, s69, s68")
        k("s_cmp_ge_u32 s65, 72"); k("s_cselect_b32 s66, 4, s66"); k("s_cselect_b32 s67, s69, s67")
        k("s_lshl_b32 s66, s66, 2"); k(f"v_add_u32 v{t+1}, s66, v9")
        k("s_and_b32 s68, s7, 6"); k("s_mul_i32 s69, s68, 576")
        k(f"v_lshlrev_b32 v8, 5, v{t+1}"); k("v_lshl_add_u32 v8, v13, 3, v8"); k("v_add_u32 v8, s69, v8")
        k("v_mul_u32_u24 v8, 1152, v8")
        k("s_mul_i32 s68, s68, 1296"); k("s_add_u32 s68, s68, 162"); k("s_add_u32 s69, s68, 1296")
        k(f"v_mov_b32 v{t+2}, s68"); k(f"v_mov_b32 v{t+3}, s69"); k(f"v_subrev_u32 v{t+4}, 18, v{t+1}")
        k(f"v_cmp_le_u32 vcc, 18, v{t+1}")
        k(f"v_cndmask_b32 v{t+2}, v{t+2}, v{t+3}, vcc"); k(f"v_cndmask_b32 v{t+1}, v{t+1}, v{t+4}, vcc")
        k(f"v_lshrrev_b32 v{t+3}, 2, v{t+1}"); k(f"v_sub_u32 v{t+4}, v{t+1}, v{t+3}"); k(f"v_add_u32 v{t+3}, 14, v{t+3}")
        k(f"v_and_b32 v{t+5}, 3, v{t+1}"); k(f"v_cmp_eq_u32 vcc, 3, v{t+5}"); k(f"v_cndmask_b32 v{t+3}, v{t+4}, v{t+3}, vcc")
        k(f"v_mov_b32 v{t}, s67")
        dest_offsets(t,t+1,t+3,t+2)
        k.srd(24,62,5308416)
        k("s_cmp_ge_u32 s67, 9"); k(f"s_cbranch_scc1 {LUP}")
        k("s_lshl_b32 s67, s67, 6"); k("v_lshl_add_u32 v9, v10, 4, s67"); k("v_add_u32 v8, v8, v9")
        k(f"v_add_u32 v9, {3*1152}, v8"); k(f"v_add_u32 v10, {6*1152}, v8")
        for q in range(8): k(f"buffer_load_dwordx4 {vr(PR+4*q)}, v{8+q//3}, s[24:27], 0 offen offset:{(q%3)*1152}")
        k("s_waitcnt vmcnt(8)"); k(f"s_branch {LS1}")
        k(f"{LUP}:")
        k("s_sub_u32 s67, s67, 9"); k("s_lshl_b32 s67, s67, 6"); k("v_lshl_add_u32 v9, v10, 4, s67")
        k("v_cmp_eq_u32 vcc, 0, v9")
        k(f"v_sub_u32 v9, 1136, v9"); k(f"v_add_u32 v10, 16, v9"); k(f"v_mov_b32 v{t}, 576"); k(f"v_cndmask_b32 v10, v10, v{t}, vcc")
        k(f"v_add_u32 v{B0+40}, v8, v9"); k(f"v_add_u32 v{B0+43}, v8, v10")
        for j in (1,2):
            k(f"v_add_u32 v{B0+40+j}, {3*1152*j}, v{B0+40}"); k(f"v_add_u32 v{B0+43+j}, {3*1152*j}, v{B0+43}")
        for q in range(8):
            k(f"buffer_load_dwordx4 {vr(PR+4*q)}, v{B0+40+q//3}, s[24:27], 0 offen offset:{(q%3)*1152}")
            k(f"buffer_load_dword v{PR+32+q}, v{B0+43+q//3}, s[24:27], 0 offen offset:{(q%3)*1152}")
        k("s_waitcnt vmcnt(16)"); k(f"s_branch {LS1}")
        k(f"{LF}:")
        LN_=k.label("none")
        k("s_cmp_ge_u32 s64, 178"); k(f"s_cbranch_scc1 {LN_}")
        k("s_sub_u32 s65, s64, 162"); k("s_lshl_b32 s66, s7, 4"); k("s_add_u32 s65, s65, s66")
        k("s_lshr_b32 s66, s65, 2"); k("s_and_b32 s67, s65, 1"); k("s_lshl_b32 s67, s67, 10"); k("s_add_u32 s66, s66, s67")
        k("s_and_b32 s67, s65, 2"); k("s_lshl_b32 s67, s67, 4"); k("s_add_u32 s66, s66, s67")
        k("v_lshl_add_u32 v8, v12, 6, s66"); k("v_lshlrev_b32 v8, 12, v8"); k("v_lshl_add_u32 v8, v13, 3, v8")
        k("s_lshl_b32 s65, s65, 12"); k(f"s_add_u32 s65, s65, {FP}"); k("v_add_u32 v15, s65, v1")
        k.srd(24,56,8388608); k.srd(28,58,8388608)
        for ks in range(4):
            k(f"buffer_load_dwordx2 {vr(PR+4*ks,2)}, v8, s[24:27], 0 offen offset:{32*ks}")
            k(f"buffer_load_dwordx2 {vr(PR+4*ks+2,2)}, v8, s[28:31], 0 offen offset:{32*ks}")
        k("s_waitcnt vmcnt(8)"); k(f"s_branch {LS1}")
        k(f"{LN_}:"); k("s_waitcnt vmcnt(0)")
        k(f"{LS1}:")
        LS2=k.label("s2")
        k("s_cmp_ge_u32 s8, 24"); k(f"s_cbranch_scc1 {LS2}")
        for i in range(3):
            b=B0+12*i; a=XA+16*i
            for d in range(4):
                k(f"v_lshlrev_b32 v{a+2*d}, 16, v{b+d}"); k(f"v_and_b32 v{a+2*d+1}, 0xffff0000, v{b+d}")
                k(f"v_lshlrev_b32 v{a+8+2*d}, 16, v{b+8-d}"); k(f"v_and_b32 v{a+8+2*d+1}, 0xffff0000, v{b+7-d}")
    T=112
    k(f"v_pk_add_f32 {vr(T,2)}, {vr(XA,2)}, {vr(XA+2,2)}"); k(f"v_pk_mul_f32 {vr(T+2,2)}, {vr(XA,2)}, {vr(XA,2)}")
    k(f"v_pk_fma_f32 {vr(T+2,2)}, {vr(XA+2,2)}, {vr(XA+2,2)}, {vr(T+2,2)}")
    for d in range(2,24):
        a=XA+2*d
        k(f"v_pk_add_f32 {vr(T,2)}, {vr(T,2)}, {vr(a,2)}"); k(f"v_pk_fma_f32 {vr(T+2,2)}, {vr(a,2)}, {vr(a,2)}, {vr(T+2,2)}")
    k(f"v_add_f32 v{T}, v{T}, v{T+1}"); k(f"v_add_f32 v{T+1}, v{T+2}, v{T+3}")
    k(f"v_permlane32_swap_b32 v{T}, v{T+1}"); k(f"v_add_f32 v{T}, v{T}, v{T+1}"); k(f"v_mov_b32 v{T+1}, v{T}")
    k(f"v_permlane16_swap_b32 v{T}, v{T+1}"); k(f"v_add_f32 v{T}, v{T}, v{T+1}")
    k("s_lshl_b32 s36, s11, 9"); k(f"s_add_u32 s36, s36, {STAT}"); k(f"v_lshl_add_u32 v8, v12, 5, s36")
    k("v_lshrrev_b32 v9, 1, v13"); k("s_lshl_b32 s36, s32, 3"); k("v_lshl_add_u32 v9, v9, 2, s36"); k("v_add_u32 v9, v9, v8")
    k.lg(f"ds_write_b32 v9, v{T}")
    k.srd(20,4,XSZ,XP)
    LX=[k.label("x") for _ in range(4)]
    for a_ in range(3):
        k(f"{LX[a_]}:")
        if a_<2: k(f"s_cmp_lg_u32 s10, {a_}"); k(f"s_cbranch_scc1 {LX[a_+1]}")
        for d in range(8): k(f"v_cvt_pk_bf16_f32 v{T+4+d}, v{XA+16*a_+2*d}, v{XA+16*a_+2*d+1}")
        k(f"buffer_store_dwordx4 {vr(T+4)}, v{2+a_}, s[20:23], 0 offen"); k(f"buffer_store_dwordx4 {vr(T+8)}, v{5+a_}, s[20:23], 0 offen")
        if a_<2: k(f"s_branch {LX[3]}")
    k(f"{LX[3]}:")
    if not first: k.vmq+=["xs","xs"]
    k.wait_all_lg(); k("s_barrier")
    k.lg(f"ds_read_b128 {vr(T)}, v8"); k.lg(f"ds_read_b64 {vr(T+12,2)}, v8 offset:16")
    k.wait_all_lg()
    k(f"v_pk_add_f32 {vr(T,2)}, {vr(T,2)}, {vr(T+2,2)}"); k(f"v_pk_add_f32 {vr(T,2)}, {vr(T,2)}, {vr(T+12,2)}")
    RS=T+12; NM=T+13; M=T+14
    ln_scalars(k,T,T+1,T+2,RS,NM,M)
    k(f"v_fma_f32 v{T}, v{XA+8}, v{RS}, v{NM}")
    k("s_lshl_b32 s36, s11, 6"); k(f"s_add_u32 s36, s36, {L288}"); k("v_lshl_add_u32 v9, v12, 2, s36")
    k("s_cmp_eq_u32 s32, 0"); k("s_cselect_b32 s36, 0xffff, 0"); k("s_mov_b32 s37, 0")
    k(f"v_cndmask_b32 v{XA+8}, v{XA+8}, v{M}, s[36:37]")
    LK=k.label("k")
    k("s_cmp_lg_u32 s32, 0"); k(f"s_cbranch_scc1 {LK}")
    k("s_mov_b64 exec, 0xffff"); k(f"ds_write_b32 v9, v{T}"); k("s_mov_b64 exec, -1")
    k(f"{LK}:")
    k(f"v_add_f32 v{NM}, v{NM}, v{NM}")
    k("s_mul_i32 s36, s32, 6144"); k("s_lshl_b32 s37, s11, 10"); k("s_add_u32 s36, s36, s37"); k("v_add_u32 v9, s36, v1")
    for i in range(3):
        a=XA+16*i; E=T+4*(i%2); O=B0+8+4*i
        for d in range(4):
            lo=a+2*d; hi=a+8+2*d; t2=B0+2*(d%2)*2
            k(f"v_pk_add_f32 {vr(t2,2)}, {vr(lo,2)}, {vr(hi,2)}")
            k(f"v_pk_add_f32 {vr(t2+2,2)}, {vr(hi,2)}, {vr(lo,2)} neg_lo:[0,1] neg_hi:[0,1]")
            k(f"v_pk_fma_f32 {vr(t2,2)}, {vr(t2,2)}, {vr(RS,2)}, {vr(RS,2)} op_sel:[0,0,1] op_sel_hi:[1,0,1]")
            k(f"v_pk_mul_f32 {vr(t2+2,2)}, {vr(t2+2,2)}, {vr(RS,2)} op_sel_hi:[1,0]")
            k(f"v_cvt_pk_bf16_f32 v{E+d}, v{t2}, v{t2+1}"); k(f"v_cvt_pk_bf16_f32 v{O+d}, v{t2+2}, v{t2+3}")
        k.lg(f"ds_write_b128 v9, {vr(E)} offset:{EFR+i*2048}"); k.lg(f"ds_write_b128 v9, {vr(O)} offset:{OFR+i*2048}")
    k("s_waitcnt lgkmcnt(0)"); k.lgdone=len(k.lgq); k("s_barrier")
    AC=XA
    ALT=XA+16; GF=XA+20; BC=XA+36; BS=XA+40
    k(f"v_lshlrev_b32 v8, 4, v13");
    k.lg(f"ds_read_b128 {vr(AC)}, v8 offset:{L288}","L"); k.lg(f"ds_read_b128 {vr(AC+4)}, v8 offset:{L288+64}","L")
    NB=12; seq=[]
    for kp in range(9):
        for rt in range(2):
            seq.append(("E",kp,rt)); seq.append(("O",kp,rt))
    def aread(j):
        typ,kp,rt=seq[j]
        k.lg(f"ds_read_b128 {vr(B0+4*(j%NB))}, v1 offset:{(EFR if typ=='E' else OFR)+(kp*2+rt)*1024}",("A",j))
    for j in range(NB): aread(j)
    k("s_or_b32 s38, s10, s6"); k("s_cmp_eq_u32 s38, 0"); k("s_cselect_b32 s36, 0x00010001, 0"); k("s_mov_b32 s37, s36")
    k(f"v_mov_b32 v{ALT+1}, 0xbf803f80"); k(f"v_cndmask_b32 v{ALT}, 0, v{ALT+1}, s[36:37]")
    for i in range(1,4): k(f"v_mov_b32 v{ALT+i}, v{ALT}")
    k("v_lshlrev_b32 v9, 31, v12")
    k.wait(None,"L")
    for i in range(8):
        k(f"v_cndmask_b32 v{AC+8+i}, 0, v{AC+i}, s[36:37]"); k(f"v_xor_b32 v{AC+i}, v9, v{AC+i}")
    if not first: k.wait("D")
    for j,(typ,kp,rt) in enumerate(seq):
        k.wait(None,("A",j))
        A=vr(B0+4*(j%NB))
        if typ=="E":
            k(f"{MF} {vr(AC+4*rt)}, {A}, {vr(DF+4*kp)}, {vr(AC+4*rt)}")
            k(f"{MF} {vr(AC+8+4*rt)}, {A}, {vr(ALT)}, {vr(AC+8+4*rt)}")
        else:
            k(f"{MF} {vr(AC+8+4*rt)}, {A}, {vr(DF+36+4*kp)}, {vr(AC+8+4*rt)}")
        if j+NB<len(seq): aread(j+NB)
        elif j+NB<len(seq)+4:
            g_=j+NB-len(seq)
            k.lg(f"ds_read_b128 {vr(GF+4*g_)}, v1 offset:{GFR+g_*1024}","G")
    k.srd(20,4,32*147456,VP)
    k("s_mul_i32 s38, s10, 3"); k("s_add_u32 s38, s38, s32"); k("s_lshl_b32 s38, s38, 1"); k("s_add_u32 s38, s38, s11"); k("s_lshl_b32 s38, s38, 12")
    k("s_lshr_b32 s39, s9, 2"); k("s_lshl_b32 s39, s39, 8"); k("s_add_u32 s38, s38, s39")
    k("s_and_b32 s39, s9, 3"); k("s_lshl_b32 s39, s39, 2"); k("s_add_u32 s38, s38, s39")
    k(f"s_mov_b32 s39, {4*147456}")
    k("v_lshl_add_u32 v8, v12, 4, s38"); k("v_mad_u32_u24 v8, v13, s39, v8"); k(f"v_add_u32 v9, {18*4096}, v8")
    for d in range(4):
        k(f"v_cvt_pk_bf16_f32 v{BC+d}, v{AC+2*d}, v{AC+2*d+1}")
    for d in range(4):
        k(f"v_cvt_pk_bf16_f32 v{BS+d}, v{AC+8+2*d}, v{AC+8+2*d+1}")
    k.wait(None,"G")
    R=B0
    for u2 in range(2):
        cosM=vr(GF+4*u2); sinM=vr(GF+8+4*u2); b=R+16*u2
        k(f"{MF} {vr(b)}, {cosM}, {vr(BC)}, 0"); k(f"{MF} {vr(b+4)}, {sinM}, {vr(BC)}, 0")
        k(f"{MF} {vr(b+8)}, {sinM}, {vr(BS)}, 0"); k(f"{MF} {vr(b+12)}, {cosM}, {vr(BS)}, 0")
    for u2 in range(2):
        for rho in range(4):
            b=R+16*u2+rho; cc,sc,ss,cs=b,b+4,b+8,b+12; t=R+32+6*((u2*4+rho)%3)
            k(f"v_sub_f32 v{t}, v{cc}, v{ss}"); k(f"v_add_f32 v{t+1}, v{sc}, v{cs}")
            k(f"v_add_f32 v{t+2}, v{cc}, v{ss}"); k(f"v_sub_f32 v{t+3}, v{sc}, v{cs}")
            k(f"v_cndmask_b32 v{t}, v{t}, v{cc}, s[36:37]"); k(f"v_cndmask_b32 v{t+1}, v{t+1}, v{sc}, s[36:37]")
            k(f"v_cndmask_b32 v{t+2}, v{t+2}, v{cs}, s[36:37]"); k(f"v_cndmask_b32 v{t+3}, v{t+3}, v{ss}, s[36:37]")
            k(f"v_cvt_pk_bf16_f32 v{t+4}, v{t}, v{t+1}"); k(f"v_cvt_pk_bf16_f32 v{t+5}, v{t+2}, v{t+3}")
            k(f"s_mov_b32 s39, {(16*u2+rho)*147456}")
            k(f"buffer_store_dword v{t+4}, v8, s[20:23], s39 offen"); k(f"buffer_store_dword v{t+5}, v9, s[20:23], s39 offen")
    if first:
        k(f"{LS2}:")
        PR=200; OUT=B0
        k("s_cmp_ge_u32 s64, 178"); k(f"s_cbranch_scc1 {name}_fin")
        k.srd(20,4,FP+0x80000)
        k("s_mov_b32 s36, 0x05040100"); k("s_mov_b32 s37, 0x07060302")
        k("s_waitcnt vmcnt(0)")
        L2F=k.label("f2"); L2U=k.label("u2")
        k("s_cmp_ge_u32 s64, 162"); k(f"s_cbranch_scc1 {L2F}")
        k("s_cmp_lt_u32 s64, 81"); k("s_cselect_b32 s67, 0, s67")
        k("s_cmp_eq_u32 s70, 1"); k(f"s_cbranch_scc1 {L2U}")
        def trans(src):
            for n in range(8):
                o=OUT+4*(n%4)
                for qq in range(4):
                    r1,h1=src(2*qq+1,n); r0,h0=src(2*qq,n); assert h0==h1
                    k(f"v_perm_b32 v{o+qq}, v{r1}, v{r0}, s{36+h0}")
                k(f"buffer_store_dwordx4 {vr(o)}, v{15 if n<4 else 11}, s[20:23], 0 offen offset:{(n%4)*16}")
        trans(lambda q,n:(PR+4*q+n//2,n%2))
        k(f"s_branch {name}_fin")
        k(f"{L2U}:")
        trans(lambda q,n:((PR+32+q,0) if n==0 else (PR+4*q+(8-n)//2,n%2)))
        k(f"s_branch {name}_fin")
        k(f"{L2F}:")
        for ks in range(4):
            o=OUT+4*ks
            for q2 in range(4):
                k(f"v_perm_b32 v{o+q2}, v{PR+4*ks+2+q2//2}, v{PR+4*ks+q2//2}, s{36+q2%2}")
            k(f"buffer_store_dwordx4 {vr(o)}, v15, s[20:23], 0 offen offset:{ks*1024}")
        k(f"{name}_fin:")
    if STAMPS: stamp_end(k,kidx,4,2)
    k(f"{name}_done:"); k("s_endpgm")
    if first:
        i=next(j for j,l in enumerate(k.lines) if "s_load_dwordx2 s[4:5]" in l)
        k.lines.insert(i,"    s_mov_b32 s70, 0"); k.lines.insert(i,"    v_mov_b32 v15, 0"); k.lines.insert(i,"    v_mov_b32 v11, 0")
        i=k.lines.index(f"{LUP}:"); k.lines.insert(i+1,"    s_mov_b32 s70, 1")
    return k

def gen_K7(name,kidx):
    k=Kern(name,256,576,0,vgpr=64)
    k("s_cmp_ge_u32 s2, 256"); k(f"s_cbranch_scc1 {name}_done")
    if STAMPS: stamp_begin(k)
    k("s_load_dwordx2 s[4:5], s[0:1], 80"); k("s_load_dwordx2 s[6:7], s[0:1], 64")
    k("v_lshrrev_b32 v2, 6, v0"); k("v_and_b32 v14, 63, v0"); k("v_readfirstlane_b32 s8, v2")
    k("v_lshlrev_b32 v1, 4, v14"); k("v_and_b32 v12, 15, v14"); k("v_lshrrev_b32 v13, 4, v14")
    k("s_lshr_b32 s9, s2, 3"); k("s_bfe_u32 s10, s2, 0x20001"); k("s_and_b32 s11, s2, 1")
    k("s_mul_i32 s32, s11, 9"); k("s_add_u32 s32, s32, s8")
    k("s_mul_i32 s33, s9, 73728"); k("s_lshl_b32 s34, s32, 12"); k("s_add_u32 s33, s33, s34")
    k("s_lshl_b32 s34, s10, 10"); k("s_add_u32 s33, s33, s34"); k("v_add_u32 v2, s33, v1")
    for c in range(8): k(f"s_mov_b32 s{40+c}, {c*XSZ}")
    k("s_waitcnt lgkmcnt(0)")
    k.srd(12,4,8*XSZ,PP)
    for c in range(8): k.vm(f"buffer_load_dwordx4 {vr(16+4*c)}, v2, s[12:15], s{40+c} offen",c)
    k.srd(16,6,XSZ)
    k("s_and_b32 s33, s10, 1"); k("s_lshl_b32 s33, s33, 10"); k("s_add_u32 s33, s33, s9")
    k("s_and_b32 s34, s10, 2"); k("s_lshl_b32 s34, s34, 4"); k("s_add_u32 s33, s33, s34")
    k("v_lshl_add_u32 v3, v12, 6, s33"); k("v_mul_u32_u24 v3, 1152, v3")
    k("s_lshl_b32 s33, s8, 6"); k("v_lshl_add_u32 v4, v13, 4, s33")
    A=48
    for c in range(8):
        k.wait(c)
        for d in range(4):
            x=16+4*c+d; a=A+2*d
            if c==0: k(f"v_lshlrev_b32 v{a}, 16, v{x}"); k(f"v_and_b32 v{a+1}, 0xffff0000, v{x}")
            else:
                T=56+2*d
                k(f"v_lshlrev_b32 v{T}, 16, v{x}"); k(f"v_and_b32 v{T+1}, 0xffff0000, v{x}")
                k(f"v_pk_add_f32 {vr(a,2)}, {vr(a,2)}, {vr(T,2)}")
    LU=k.label("up")
    k("s_cmp_eq_u32 s11, 1"); k(f"s_cbranch_scc1 {LU}")
    for d in range(4): k(f"v_cvt_pk_bf16_f32 v{16+d}, v{A+2*d}, v{A+2*d+1}")
    k("v_add_u32 v3, v3, v4"); k("buffer_store_dwordx4 v[16:19], v3, s[16:19], 0 offen")
    k(f"s_branch {name}_fin")
    k(f"{LU}:")
    k(f"v_cvt_pk_bf16_f32 v16, v{A+6}, v{A+5}"); k(f"v_cvt_pk_bf16_f32 v17, v{A+4}, v{A+3}"); k(f"v_cvt_pk_bf16_f32 v18, v{A+2}, v{A+1}")
    k(f"v_cvt_pk_bf16_f32 v19, v{A+7}, v{A}")
    k("v_cmp_eq_u32 vcc, 0, v4")
    k("v_sub_u32 v5, v3, v4"); k("v_add_u32 v5, 1138, v5")
    k("v_add_u32 v6, 14, v5"); k("v_add_u32 v7, 576, v3"); k("v_cndmask_b32 v6, v6, v7, vcc")
    k("buffer_store_dwordx3 v[16:18], v5, s[16:19], 0 offen offset:2")
    k("buffer_store_short v19, v5, s[16:19], 0 offen")
    k("buffer_store_short_d16_hi v19, v6, s[16:19], 0 offen")
    k(f"{name}_fin:")
    if STAMPS: stamp_end(k,kidx,4,2)
    k(f"{name}_done:"); k("s_endpgm")
    return k

if __name__=="__main__":
    out=[a for a in sys.argv[1:] if not a.startswith("--")][0]
    smod=""
    for a in sys.argv:
        if a.startswith("--smod="): smod=" "+a[7:].replace("+"," ")
    k1=gen_KA("ka1_kernel",0,True); kf=gen_KF("kf_kernel",1,smod); ka=gen_KA("ka2_kernel",2,False); k7=gen_K7("k7_kernel",4)
    kf2=gen_KF("kf2_kernel",3,smod) if STAMPS else kf
    L=[k1,kf,ka,kf2,k7]
    open(out,"w").write(build(L,L))
    for k in (k1,kf,ka,k7): print(k.name,"lines",len(k.lines),"nops",k.nops)
    if "--v" in sys.argv:
        for x in kf.noplog: print(x)
```

```python
import re
NAME = "interleave_layers__spectral_fnet__dense_activation_relu__prompt"
HDR = """; Kernarg layout (88 bytes, ptrs only, base s[0:1]):
"""
STAMP_OFF = 0x0F000000
TRANS = ("v_exp_f32","v_log_f32","v_rcp_f32","v_rsq_f32","v_sqrt_f32","v_sin_f32","v_cos_f32")
def regs(tok):
    tok=tok.strip()
    if tok.startswith("-"): tok=tok[1:]
    m=re.fullmatch(r"([vas])(\d+)",tok)
    if m: return [(m.group(1),int(m.group(2)))]
    m=re.fullmatch(r"([vas])\[(\d+):(\d+)\]",tok)
    if m: return [(m.group(1),i) for i in range(int(m.group(2)),int(m.group(3))+1)]
    if tok=="vcc": return [("s",106),("s",107)]
    return []
def parse(line):
    line=line.split(";")[0].strip()
    sp=line.split(None,1)
    op=sp[0]; rest=sp[1] if len(sp)>1 else ""
    ops=[o.strip() for o in rest.split(",")]
    ops=[o.split()[0] if o else o for o in ops]
    R=[regs(o) for o in ops]
    d=[];s=[];cls="s";C=[]
    if op.startswith("v_mfma"):
        cls="m"; d=R[0]; s=R[1]+R[2]; C=R[3]
    elif op.startswith("v_"):
        cls="v"
        d=R[0]; s=sum(R[1:],[])
        if "swap" in op: d=R[0]+R[1]; s=list(d)
        if op.startswith(("v_fmac","v_dot2c")): s=s+R[0]
        if op.startswith("v_cndmask") and len(ops)==3: s=s+regs("vcc")
    elif op.startswith("buffer_load"):
        cls="vm"; d=R[0]; s=sum(R[1:],[])
    elif op.startswith("buffer_store"):
        cls="vm"; s=sum(R,[]); C=R[0] if ("x3" in op or "x4" in op) else []
    elif op.startswith("ds_read"):
        cls="ds"; d=R[0]; s=R[1]
    elif op.startswith("ds_"):
        cls="ds"; s=sum(R,[])
    return op,cls,d,s,C
class Kern:
    def __init__(self, name, grid, block, lds, vgpr, agpr=0, sgpr=96):
        self.name=name; self.grid=grid; self.block=block; self.lds=lds
        self.vgpr=vgpr; self.agpr=agpr; self.sgpr=sgpr; self.lines=[]
        self.nlab=0; self.hist=[]; self.nops=0; self.noplog=[]
        self.vmq=[]; self.vmdone=0; self.lgq=[]; self.lgdone=0
    def need(self, op,cls,d,s,C):
        need=0; dist=0
        ds=set(d); ss=set(s); cs=set(C)
        for (pop,pcls,pd,ps,pC,w) in reversed(self.hist):
            if dist>=12: break
            pds=set(pd); n=0
            if pcls=="v":
                pv={r for r in pds if r[0]!="s"}; psg={r for r in pds if r[0]=="s"}
                if cls=="m" and pv&(ss|cs): n=2
                if op.startswith(("v_readfirstlane","v_readlane")) and pv&ss: n=max(n,1)
                if "permlane" in op and pv&ss: n=max(n,2)
                if cls=="v" and psg&ss: n=max(n,2)
                if cls=="vm" and psg&ss: n=max(n,5)
                if pop.startswith(TRANS) and cls=="v" and not op.startswith(TRANS) and pv&ss: n=max(n,1)
                if pop.startswith("v_dot") and (pv&(ss|ds)): n=max(n,3)
            if pcls=="m":
                big = "32x32" in pop
                if cls=="m":
                    if pds&ss: n=12 if big else 8
                    if pds&cs and not (pd==C): n=max(n,10 if big else 6)
                    if pds&ds and not (pd==C): n=max(n,12 if big else 8)
                elif cls in("v","vm","ds") and pds&(ss|ds): n=12 if big else 8
                if cls=="v" and set(pC)&ds: n=max(n,7 if big else 3)
            if pcls=="vm" and pop.startswith("buffer_store") and set(pC)&ds: n=max(n,2)
            need=max(need,n-dist)
            dist+=w
        return need
    def __call__(self, text):
        for l in text.split("\n"):
            l=l.strip()
            if not l: continue
            if l.endswith(":"):
                self.lines.append(l); continue
            op,cls,d,s,C=parse(l)
            n=self.need(op,cls,d,s,C)
            if n>0:
                self.lines.append(f"    s_nop {n-1}"); self.hist.append(("s_nop","s",[],[],[],n)); self.nops+=1
                self.noplog.append((len(self.lines),n,l))
            w=1
            if op=="s_nop": w=int(l.split()[1])+1
            self.lines.append("    "+l); self.hist.append((op,cls,d,s,C,w))
            if len(self.hist)>40: self.hist=self.hist[-24:]
    def vm(self, text, tag=None):
        self(text); self.vmq.append(tag); assert len(self.vmq)-self.vmdone<=63, "vmcnt overflow"
    def vm_out(self): return len(self.vmq)-self.vmdone
    def vm_wait(self, tag):
        i=len(self.vmq)-1-self.vmq[::-1].index(tag)
        if i<self.vmdone: return None
        n=len(self.vmq)-1-i; self.vmdone=i+1
        return n
    def lg(self, text, tag=None):
        self(text); self.lgq.append(tag); assert len(self.lgq)-self.lgdone<=15, "lgkmcnt overflow"
    def lg_wait(self, tag):
        i=len(self.lgq)-1-self.lgq[::-1].index(tag)
        if i<self.lgdone: return None
        n=len(self.lgq)-1-i; self.lgdone=i+1
        return n
    def wait(self, vtag=None, ltag=None):
        a=self.vm_wait(vtag) if vtag is not None else None
        b=self.lg_wait(ltag) if ltag is not None else None
        s=[]
        if a is not None: s.append(f"vmcnt({a})")
        if b is not None: s.append(f"lgkmcnt({b})")
        if s: self("s_waitcnt "+" ".join(s))
    def wait_all_lg(self):
        if self.lgdone<len(self.lgq): self("s_waitcnt lgkmcnt(0)")
        self.lgdone=len(self.lgq)
    def wait_all_vm(self):
        if self.vmdone<len(self.vmq): self("s_waitcnt vmcnt(0)")
        self.vmdone=len(self.vmq)
    def label(self, base="L"):
        self.nlab+=1
        return f"{self.name}_{base}{self.nlab}"
    def srd(self, d, ptr, nbytes, off=None, soff=None):
        self(f"s_add_u32 s{d}, s{ptr}, {hex(off or 0)}")
        self(f"s_addc_u32 s{d+1}, s{ptr+1}, 0")
        if soff is not None:
            self(f"s_add_u32 s{d}, s{d}, s{soff}")
            self(f"s_addc_u32 s{d+1}, s{d+1}, 0")
        self(f"s_and_b32 s{d+1}, s{d+1}, 0xffff")
        self(f"s_mov_b32 s{d+2}, {hex(nbytes)}")
        self(f"s_mov_b32 s{d+3}, 0x20000")
    def text(self):
        acc = (self.vgpr+3)//4*4
        nfv = acc+self.agpr if self.agpr else self.vgpr
        body = "\n".join(self.lines)
        t = f""".text
.globl {self.name}
.p2align 8
.type {self.name},@function
{self.name}:
{body}
"""
        kd = f""".section .rodata,"a"
.p2align 6
.amdhsa_kernel {self.name}
  .amdhsa_next_free_vgpr {nfv}
  .amdhsa_next_free_sgpr {self.sgpr}
  .amdhsa_accum_offset {acc}
  .amdhsa_group_segment_fixed_size 0
  .amdhsa_kernarg_size 88
  .amdhsa_user_sgpr_count 2
  .amdhsa_user_sgpr_kernarg_segment_ptr 1
  .amdhsa_system_sgpr_workgroup_id_x 1
  .amdhsa_float_denorm_mode_32 3
  .amdhsa_float_denorm_mode_16_64 3
.end_amdhsa_kernel
"""
        return t+kd
def build(launches, kerns, hdr=HDR):
    out = hdr
    for k in launches:
        out += f"; @launch kernel={k.name} grid=({k.grid},1,1) block=({k.block},1,1) lds={k.lds}\n"
    out += '.amdgcn_target "amdgcn-amd-amdhsa--gfx950"\n'
    seen=[]
    for k in kerns:
        if k.name in seen: continue
        seen.append(k.name)
        out += k.text()
    return out
def stamp_begin(k, s_t=72):
    k.nmark=0
    mark(k)
def mark(k):
    if not hasattr(k,"nmark"): return
    assert k.nmark<7
    k.lines.append(f"    s_memrealtime s[{72+2*k.nmark}:{73+2*k.nmark}]"); k.nmark+=1
def cyc_begin(k):
    if hasattr(k,"nmark"): k.lines.append("    s_memtime s[66:67]")
def cyc_end(k):
    if not hasattr(k,"nmark"): return
    i=72+2*k.nmark; k.nmark+=1
    k.lines+= ["    s_memtime s[68:69]","    s_waitcnt lgkmcnt(0)","    s_sub_u32 s68, s68, s66",f"    s_add_u32 s{i}, s72, s68",f"    s_addc_u32 s{i+1}, s73, 0"]
def stamp_end(k, kidx, s_ws, s_wg, nwg=512, sd=88, v=0, vt=1):
    k(f"s_waitcnt vmcnt(0) lgkmcnt(0)")
    k(f"s_memrealtime s[86:87]")
    for i in range(k.nmark,7): k(f"s_mov_b64 s[{72+2*i}:{73+2*i}], 0")
    k.srd(sd, s_ws, 0x100000, STAMP_OFF)
    k(f"s_waitcnt lgkmcnt(0)")
    for i in range(16): k(f"v_mov_b32 v{vt+1+i}, s{72+i}")
    k(f"s_lshl_b32 s92, s{s_wg}, 6")
    k(f"s_add_u32 s92, s92, {kidx*nwg*64}")
    k(f"v_mov_b32 v{vt}, s92")
    k(f"v_cmp_eq_u32 vcc, 0, v{v}")
    k(f"s_and_saveexec_b64 s[94:95], vcc")
    l=k.label("st")
    k(f"s_cbranch_execz {l}")
    assert (vt+1)%2==0
    for i in range(4): k(f"buffer_store_dwordx4 v[{vt+1+4*i}:{vt+4+4*i}], v{vt}, s[{sd}:{sd+3}], 0 offen offset:{16*i}")
    k(f"{l}:")
    k(f"s_mov_b64 exec, -1")
```

```python
import sys, struct
from asmlib import *
WP=0x0; VP=0x0B00000; XP=0x1100000; PP=0x1400000
XSZ=2359296; VCL=147456
STAMPS = "--stamps" in sys.argv
def opt(name,default):
    for a in sys.argv:
        if a.startswith("--"+name+"="): return a.split("=",1)[1]
    return default
def mod(name,default=""):
    m=opt(name,default).replace("+"," ")
    return " "+m if m else ""
def f2u(x): return struct.unpack("<I",struct.pack("<f",x))[0]
def fh(x): return hex(f2u(x))
INV576=fh(1.0/576); EPS=fh(1e-5)
MF="v_mfma_f32_16x16x32_bf16"; MF16="v_mfma_f32_16x16x16_bf16"
def vr(b,n=4): return f"v[{b}:{b+n-1}]" if n>1 else f"v{b}"
def ar(b,n=4): return f"a[{b}:{b+n-1}]"
def divmagic(d,nmax):
    for sh in range(8,31):
        m=((1<<sh)+d-1)//d
        if m*nmax<(1<<32) and all((z*m)>>sh==z//d for z in range(nmax+1)): return m,sh
    raise Exception
def sdivmod(k,q,r,z,d,nmax):
    m,sh=divmagic(d,nmax)
    k(f"s_mul_i32 s{q}, s{z}, {m}"); k(f"s_lshr_b32 s{q}, s{q}, {sh}")
    k(f"s_mul_i32 s71, s{q}, {d}"); k(f"s_sub_u32 s{r}, s{z}, s71")

def ln_scalars(k, S, Q, T, RS, NM, M=None):
    k(f"v_mul_f32 v{S}, {INV576}, v{S}")
    k(f"v_mul_f32 v{Q}, {INV576}, v{Q}")
    k(f"v_fma_f32 v{Q}, -v{S}, v{S}, v{Q}")
    k(f"v_max_f32 v{Q}, 0, v{Q}")
    k(f"v_cvt_pk_bf16_f32 v{T}, v{S}, v{Q}")
    k(f"v_lshlrev_b32 v{S}, 16, v{T}")
    k(f"v_and_b32 v{Q}, 0xffff0000, v{T}")
    k(f"v_add_f32 v{Q}, {EPS}, v{Q}")
    k(f"v_cvt_pk_bf16_f32 v{T}, v{Q}, v{Q}")
    k(f"v_and_b32 v{Q}, 0xffff0000, v{T}")
    k(f"v_sqrt_f32 v{Q}, v{Q}")
    k(f"v_cvt_pk_bf16_f32 v{T}, v{Q}, v{Q}")
    k(f"v_and_b32 v{Q}, 0xffff0000, v{T}")
    k(f"v_rcp_f32 v{RS}, v{Q}")
    if M is not None: k(f"v_mov_b32 v{M}, v{S}")
    k(f"v_mul_f32 v{NM}, -v{S}, v{RS}")
def identity(k, I, vc, vg, t):
    k(f"v_and_b32 v{t}, 1, v{vc}"); k(f"v_lshlrev_b32 v{t}, 4, v{t}"); k(f"v_mov_b32 v{t+1}, 0x3f80"); k(f"v_lshlrev_b32 v{t}, v{t}, v{t+1}")
    k(f"v_lshrrev_b32 v{t+1}, 1, v{vc}"); k(f"v_lshlrev_b32 v{I+1}, 1, v{vg}")
    k(f"v_cmp_eq_u32 vcc, v{t+1}, v{I+1}"); k(f"v_cndmask_b32 v{I}, 0, v{t}, vcc")
    k(f"v_add_u32 v{I+1}, 1, v{I+1}")
    k(f"v_cmp_eq_u32 vcc, v{t+1}, v{I+1}"); k(f"v_cndmask_b32 v{I+1}, 0, v{t}, vcc")
    k(f"v_lshrrev_b32 v{t+1}, 2, v{vc}"); k(f"v_cmp_eq_u32 vcc, v{t+1}, v{vg}")

def gen_KF(name, kidx):
    STAT=147456; PRIV=STAT+2048
    k=Kern(name,256,256,PRIV+2048,vgpr=256,agpr=256)
    k("s_cmp_ge_u32 s2, 256"); k(f"s_cbranch_scc1 {name}_done")
    if STAMPS: stamp_begin(k)
    k("s_load_dwordx2 s[4:5], s[0:1], 80")
    k("v_lshrrev_b32 v2, 6, v0"); k("v_and_b32 v14, 63, v0")
    k("v_readfirstlane_b32 s6, v2")
    k("v_lshlrev_b32 v1, 4, v14"); k("v_and_b32 v12, 15, v14"); k("v_lshrrev_b32 v13, 4, v14")
    k("s_and_b32 s7, s2, 1"); k("s_lshl_b32 s7, s7, 2"); k("s_bfe_u32 s9, s2, 0x20003"); k("s_add_u32 s7, s7, s9")
    k("s_bfe_u32 s8, s2, 0x20001"); k("s_lshl_b32 s8, s8, 2"); k("s_lshr_b32 s9, s2, 6"); k("s_add_u32 s9, s8, s9")
    k("s_sub_u32 s10, 32, s9"); k("s_cmp_eq_u32 s9, 0"); k("s_cselect_b32 s10, 16, s10")
    k("s_bitcmp1_b32 s2, 5"); k("s_cselect_b32 s8, s10, s9")
    k(f"s_mul_i32 s10, s8, {VCL}"); k(f"s_mul_i32 s11, s9, {VCL}")
    k("s_cmp_ge_u32 s8, 17"); k("s_cselect_b32 s11, s11, s10"); k("s_cselect_b32 s32, 73728, 0")
    k(f"s_mov_b32 s33, {fh(-1/2048)}"); k(f"s_cselect_b32 s33, {fh(1/2048)}, s33")
    k("s_lshl_b32 s34, s6, 15")
    for n in range(9):
        if n<8: k(f"s_add_u32 s35, s34, {n*4096}")
        else: k("s_lshl_b32 s35, s6, 12"); k("s_add_u32 s35, s35, 131072")
        k("s_add_u32 s36, s35, s32"); k("s_sub_u32 s37, s35, s32")
        k("s_cmp_lt_u32 s35, 73728"); k("s_cselect_b32 s36, s36, s37"); k(f"s_add_u32 s{44+n}, s36, s11")
        if n in (0,2):
            k("s_add_u32 s36, s35, s10"); k(f"s_cmp_eq_u32 s6, {n}"); k(f"s_cselect_b32 s{44+n}, s36, s{44+n}")
    for n in range(4): k(f"s_mov_b32 s{40+n}, {n*4096}")
    k("s_lshl_b32 s9, s7, 2"); k("s_add_u32 s9, s9, s6"); k("s_mul_i32 s9, s9, 331776")
    k("s_mul_i32 s32, s8, 73728")
    k(f"s_mul_i32 s35, s7, {XSZ}"); k("s_add_u32 s35, s35, s32")
    k("s_lshl_b32 s34, s6, 14"); k("v_add_u32 v2, s34, v1")
    k("s_and_b32 s34, s6, 1"); k("s_lshl_b32 s34, s34, 3"); k("s_lshr_b32 s36, s6, 1"); k("s_lshl_b32 s36, s36, 12")
    k("s_add_u32 s34, s34, s36"); k("s_add_u32 s34, s34, 65536"); k("v_add_u32 v3, s34, v1")
    k("s_waitcnt lgkmcnt(0)")
    k.srd(16,4,32*VCL,VP); k.srd(24,4,73728,XP,32)
    X1=160; FB=192
    def acc(n,jt): return 16+n*16+jt*4
    def x1reg(n,jt): return X1+((n//2)*4+jt)*4+(n%2)*2 if n<8 else X1+64+jt*2
    order=[8,0,1,2,3,4,5,6,7]
    pre=[]
    for pos,n in enumerate(order):
        for ks in range(4):
            pre.append((f"buffer_load_dwordx4 {ar((pos*4+ks)*4)}, v1, s[16:19], s{44+n} offen offset:{ks*1024}", ("V",pos,ks)))
        if n==8:
            for jt in range(4): pre.append((f"buffer_load_dwordx2 {vr(x1reg(8,jt),2)}, v3, s[24:27], 0 offen offset:{jt*1024}", ("X",n)))
        elif n%2==0:
            for jt in range(4): pre.append((f"buffer_load_dwordx4 {vr(x1reg(n,jt))}, v2, s[24:27], s{40+n//2} offen offset:{jt*1024}", ("X",n)))
    RING=48; NW=324
    seq=[36,37,38,39]+list(range(36))+list(range(40,48))
    def wslot(m): return seq[m%RING]*4
    st={"next":0,"free":4}
    def issue_one():
        if pre:
            k.vm(*pre.pop(0)); return True
        m=st["next"]
        if m>=NW or m>=st["free"] or k.vm_out()>=62: return False
        if m%4==0 and m>0: k("s_add_u32 s36, s36, 4096")
        k.vm(f"buffer_load_dwordx4 {ar(wslot(m))}, v1, s[12:15], s36 offen offset:{(m%4)*1024}", ("Z",m))
        st["next"]+=1
        return True
    for _ in range(int(opt("n0","8"))): issue_one()
    k.srd(12,4,331776,WP,9)
    k("s_mov_b32 s36, 0")
    k.srd(28,4,73728,PP,35)
    t=128; FG=[]
    k(f"v_lshl_add_u32 v{t}, v12, 6, s8"); k(f"v_add_u32 v{t+1}, 32, v{t}")
    k(f"v_lshlrev_b32 v{t+4}, 2, v13"); k(f"v_cvt_f32_u32 v{t+4}, v{t+4}")
    for j in range(2):
        k(f"v_cvt_f32_u32 v{t+j}, v{t+j}"); k(f"v_mul_f32 v{t+j}, s33, v{t+j}"); k(f"v_mul_f32 v{t+2+j}, v{t+j}, v{t+4}")
    k("s_mov_b32 s34, 0x80008000")
    for ks in range(4):
        for j in range(2):
            f=t+4; c_=t+8; s_=t+12
            for q in range(4):
                K=16*ks+q
                FG.append(f"v_fmamk_f32 v{f+q}, v{t+j}, {fh(float(K))}, v{t+2+j}" if K else f"v_mov_b32 v{f+q}, v{t+2+j}")
            for q in range(4): FG+=[f"v_cos_f32 v{c_+q}, v{f+q}", f"v_sin_f32 v{s_+q}, v{f+q}"]
            for q in range(4): FG.append(f"v_cvt_pk_bf16_f32 v{c_+q}, v{c_+q}, v{s_+q}")
            for q in range(4): FG.append(f"v_accvgpr_write_b32 a{FB+(2*j*4+ks)*4+q}, v{c_+q}")
            for q in (1,3): FG.append(f"v_xor_b32 v{c_+q}, s34, v{c_+q}")
            for q in range(4): FG.append(f"v_accvgpr_write_b32 a{FB+((2*j+1)*4+ks)*4+q}, v{c_+q}")
    fgp=int(opt("fgp","10"))
    for i,x in enumerate(FG):
        k(x)
        if i%fgp==fgp-1: issue_one()
    ID=10; ON=4
    identity(k,ID,12,13,t)
    k("s_lshl_b32 s34, s6, 3"); k(f"s_add_u32 s34, s34, {STAT}")
    k(f"v_lshl_add_u32 v{t}, v12, 5, s34"); k(f"v_lshlrev_b32 v15, 3, v14"); k(f"v_add_u32 v15, {PRIV}, v15")
    k(f"v_cndmask_b32 v15, v15, v{t}, vcc")
    for i in range(4): k(f"v_mov_b32 v{ON+i}, 0x3f803f80")
    for i in (1,2,3):
        m=sum(1<<b for b in range(32) if b%4==i)
        k(f"s_mov_b32 s{54+2*i}, {hex(m)}"); k(f"s_mov_b32 s{55+2*i}, {hex(m)}")
    k("s_cmp_eq_u32 s7, 0"); k("s_cselect_b32 s38, 0x10000, 0"); k("s_cselect_b32 s39, 0xffff0000, 0")
    mark(k)
    SA=160; GA=176
    seen=set()
    def stat_mf(n):
        out=[]
        for jt in range(4):
            first = jt not in seen; seen.add(jt)
            x=x1reg(n,jt) if n==8 else x1reg(n-1,jt)
            w_=2 if n==8 else 4; M_=MF16 if n==8 else MF
            out.append(f"{M_} {ar(SA+4*jt)}, {vr(ON,w_)}, {vr(x,w_)}, {'0' if first else ar(SA+4*jt)}")
            out.append(f"{M_} {ar(GA+4*jt)}, {vr(x,w_)}, {vr(x,w_)}, {'0' if first else ar(GA+4*jt)}")
        return out
    def cvts(n): return [f"v_cvt_pk_bf16_f32 v{x1reg(n,jt)+h}, v{acc(n,jt)+2*h}, v{acc(n,jt)+2*h+1}" for jt in range(4) for h in range(2)]
    fill=[]; late=[]
    for pos,n in enumerate(order):
        for ks in range(4):
            k.wait(("V",pos,ks))
            if "--mk2" in sys.argv and ks==0 and pos in (0,3,6): mark(k)
            for jt in range(4):
                k(f"{MF} {vr(acc(n,jt))}, {ar((pos*4+ks)*4)}, {ar(FB+(jt*4+ks)*4)}, {'0' if ks==0 else vr(acc(n,jt))}")
                if ks>0 and fill: k(fill.pop(0))
                if jt==3: st["free"]=4+pos*4+ks+1
                if jt%2==1: issue_one()
            if ks==3:
                assert not fill
                for t_ in late: k(t_)
                late=[]
        k.wait(("X",n if n==8 else n&~1))
        for jt in range(4):
            k(f"{MF16} {vr(acc(n,jt))}, {vr(ID,2)}, {vr(x1reg(n,jt),2)}, {vr(acc(n,jt))}")
        fill=cvts(n)
        if n==8 or n%2==1: late=stat_mf(n)
    for t_ in fill: k(t_)
    for t_ in late: k(t_)
    mark(k)
    k("v_add_u32 v4, 73728, v2"); k("v_add_u32 v5, 73728, v3")
    k("v_add_u32 v6, 65536, v1"); k("v_add_u32 v7, 131072, v1")
    k(f"v_lshlrev_b32 v11, 5, v14"); k(f"v_add_u32 v11, {STAT}, v11")
    k("s_lshl_b32 s34, s6, 9"); k(f"s_add_u32 s34, s34, {PRIV}")
    k("v_lshl_add_u32 v13, v12, 3, s34"); k("v_lshl_add_u32 v12, v14, 3, s34")
    SQ=232
    for jt in range(4):
        b=SQ+6*jt
        k(f"v_accvgpr_read_b32 v{b}, a{SA+4*jt}")
        for i in range(4): k(f"v_accvgpr_read_b32 v{b+1+i}, a{GA+4*jt+i}")
        for i in (1,2,3): k(f"v_cndmask_b32 v{b+1}, v{b+1}, v{b+1+i}, s[{54+2*i}:{55+2*i}]")
        k.lg(f"ds_write_b64 v15, {vr(b,2)} offset:{jt*512}")
    st["free"]=RING
    while issue_one(): pass
    k.wait_all_lg(); k("s_barrier")
    k.lg(f"ds_read_b128 {vr(SQ)}, v11"); k.lg(f"ds_read_b128 {vr(SQ+4)}, v11 offset:16")
    k.wait_all_lg()
    k(f"v_pk_add_f32 {vr(SQ,2)}, {vr(SQ,2)}, {vr(SQ+2,2)}"); k(f"v_pk_add_f32 {vr(SQ+4,2)}, {vr(SQ+4,2)}, {vr(SQ+6,2)}")
    k(f"v_pk_add_f32 {vr(SQ,2)}, {vr(SQ,2)}, {vr(SQ+4,2)}")
    ln_scalars(k,SQ,SQ+1,SQ+2,SQ+4,SQ+5)
    k.lg(f"ds_write_b64 v12, {vr(SQ+4,2)}")
    RN=248
    for jt in range(4): k.lg(f"ds_read_b64 {vr(RN+2*jt,2)}, v13 offset:{jt*128}", ("RN",jt))
    tq=[SQ,SQ+4,SQ+8,SQ+12]; ti=0
    for jt in range(4):
        k.wait(None,("RN",jt))
        for p in range(5):
            T=tq[ti%4]; ti+=1
            tiles=[2*p,2*p+1] if p<4 else [8]
            for n in tiles:
                for h in range(2):
                    a=acc(n,jt)+2*h
                    k(f"v_pk_fma_f32 {vr(a,2)}, {vr(a,2)}, {vr(RN+2*jt,2)}, {vr(RN+2*jt,2)} op_sel:[0,0,1] op_sel_hi:[1,0,1]")
            for i,n in enumerate(tiles):
                for h in range(2):
                    a=acc(n,jt)+2*h
                    k(f"v_cvt_pk_bf16_f32 v{T+2*i+h}, v{a}, v{a+1}")
            if len(k.lgq)-k.lgdone>=12: k.wait_all_lg()
            if p<4: k.lg(f"ds_write_b128 v2, {vr(T)} offset:{p*4096+jt*1024}")
            else:   k.lg(f"ds_write_b64 v3, {vr(T,2)} offset:{jt*1024}")
    k.wait_all_lg(); k("s_barrier"); mark(k); cyc_begin(k)
    passes=[[0,1,2,3],[4,5,8],[6,7]]
    ordA=[x for x in range(18) if not (x<16 and x%4==3)]+[3,7,11,15]
    steps=[]; z=0
    for G in range(2):
        for pi,tiles in enumerate(passes):
            for i in range(18):
                kap = ordA[i] if (G==1 and pi==0) else i
                steps.append(dict(G=G,pi=pi,i=i,tiles=tiles,kap=kap,z=z)); z+=len(tiles)
    assert z==NW
    def bread(s):
        if s>=len(steps): return []
        d=steps[s]; out=[]
        for jt in range(4):
            adr=d["G"]*73728+d["kap"]*4096+jt*1024
            base={0:1,1:6,2:7}[adr>>16]
            out.append(("lg",f"ds_read_b128 {ar(FB+(s%4)*16+jt*4)}, v{base} offset:{adr&0xffff}",("B",s)))
        return out
    tcount=[0]
    def tmp():
        tcount[0]+=1; return SQ+(tcount[0]%6)*4
    def epi(G,tiles):
        out=[]
        sm={0:mod("sA"),4:mod("sB"),6:mod("sC")}[tiles[0]]
        units=[]
        for n in tiles:
            if n==8: units.append([8])
            elif n%2==0: units.append([n,n+1])
        for u in units:
            for jt in range(4):
                T=tmp(); t=[]
                for i,n in enumerate(u):
                    for h in range(2):
                        a=acc(n,jt)+2*h
                        t.append(("v",f"v_cvt_pk_bf16_f32 v{T+2*i+h}, v{a}, v{a+1}",None))
                if G==0:
                    for i in range(2*len(u)): t.append(("v",f"v_pk_max_i16 v{T+i}, v{T+i}, 0",None))
                    if len(u)==2: t.append(("lg",f"ds_write_b128 v4, {vr(T)} offset:{(u[0]//2)*4096+jt*1024}","HW"))
                    else: t.append(("lg",f"ds_write_b64 v5, {vr(T,2)} offset:{jt*1024}","HW"))
                else:
                    if len(u)==2: t.append(("vm",f"buffer_store_dwordx4 {vr(T)}, v2, s[28:31], s{40+u[0]//2} offen offset:{jt*1024}{sm}","ST"))
                    else: t.append(("vm",f"buffer_store_dwordx2 {vr(T,2)}, v3, s[28:31], 0 offen offset:{jt*1024}{sm}","ST"))
                out+=t
        return out
    def init(tiles):
        out=[]
        for n in tiles:
            for jt in range(4):
                a=acc(n,jt); x=x1reg(n,jt)
                for h in range(2):
                    out.append(("v",f"v_mul_u32_u24 v{a+2*h}, s38, v{x+h}",None))
                    out.append(("v",f"v_and_b32 v{a+2*h+1}, s39, v{x+h}",None))
        return out
    win=[(19,35,epi(0,passes[0])+init(passes[0])),
         (37,50,epi(0,passes[1])),
         (55,62,epi(0,passes[2])),
         (63,71,init(passes[1])+init(passes[2])),
         (73,88,epi(1,passes[0])),
         (91,106,epi(1,passes[1]))]
    extra={s:[] for s in range(len(steps))}
    for a,b,t in win:
        n=b-a+1
        for i in range(n): extra[a+i]=extra[a+i]+t[len(t)*i//n:len(t)*(i+1)//n]
    def emit(t):
        if t[0]=="v": k(t[1])
        elif t[0]=="lg": k.lg(t[1],t[2])
        else: k.vm(t[1],t[2])
    for s in (0,1):
        for t in bread(s): emit(t)
    for s,d in enumerate(steps):
        if s in (52,64):
            k.wait_all_lg(); k("s_barrier")
        if s==54 and "--mk2" not in sys.argv: mark(k)
        k.wait(("Z",d["z"]+len(d["tiles"])-1),("B",s))
        fl=bread(s+2)+extra[s]
        nm=4*len(d["tiles"]); cnt=0; done=0
        for ti,n in enumerate(d["tiles"]):
            z=d["z"]+ti
            for jt in range(4):
                C = "0" if (d["G"]==0 and d["i"]==0) else vr(acc(n,jt))
                k(f"{MF} {vr(acc(n,jt))}, {ar(wslot(z))}, {ar(FB+(s%4)*16+jt*4)}, {C}")
                cnt+=1
                if jt==3:
                    st["free"]=z+1+RING
                    if "--wcl" in sys.argv:
                        if ti==len(d["tiles"])-1:
                            while issue_one(): pass
                    else: issue_one()
                else:
                    tgt=(len(fl)*cnt+nm-1)//nm if cnt<nm-1 else len(fl)
                    while done<tgt: emit(fl[done]); done+=1
        assert done==len(fl)
    if "--mk2" not in sys.argv:
        mark(k); cyc_end(k)
    for t in epi(1,passes[2]): emit(t)
    if STAMPS: stamp_end(k,kidx,4,2)
    k(f"{name}_done:"); k("s_endpgm")
    return k

def gen_KA(name, kidx, first):
    EFR=0; OFR=18432; GFR=36864; STAT=GFR+4096; L288=STAT+1024
    grid=256 if first else 192
    PKL=L288+128
    NP=22
    k=Kern(name,grid,640 if first else 384,82560 if first else L288+128,vgpr=168,agpr=0 if first else 4*NP)
    AM=mod("amod"); PM=mod("pmod")
    k(f"s_cmp_ge_u32 s2, {grid}"); k(f"s_cbranch_scc1 {name}_done")
    if STAMPS: stamp_begin(k)
    k("s_load_dwordx2 s[4:5], s[0:1], 80")
    if first:
        k("s_load_dwordx2 s[52:53], s[0:1], 0")
        k("s_load_dwordx4 s[60:63], s[0:1], 48")
    k("v_lshrrev_b32 v2, 6, v0"); k("v_and_b32 v14, 63, v0")
    k("v_readfirstlane_b32 s6, v2")
    k("v_lshlrev_b32 v1, 4, v14")
    k("v_and_b32 v12, 15, v14"); k("v_lshrrev_b32 v13, 4, v14")
    if first:
        k("s_cmp_ge_u32 s2, 192"); k(f"s_cbranch_scc1 {name}_pack")
        k("s_cmp_ge_u32 s6, 6"); k(f"s_cbranch_scc1 {name}_pack")
    k("s_and_b32 s7, s2, 7"); k("s_lshr_b32 s8, s2, 3")
    k("s_and_b32 s9, s8, 7"); k("s_lshl_b32 s10, s7, 3"); k("s_add_u32 s9, s9, s10")
    k("s_lshr_b32 s10, s8, 3")
    k("s_and_b32 s11, s6, 1"); k("s_lshr_b32 s32, s6, 1")
    k("s_and_b32 s33, s9, 31"); k("s_lshr_b32 s34, s9, 5")
    k("s_lshl_b32 s34, s34, 1"); k("s_add_u32 s34, s34, s11")
    k("s_mul_i32 s35, s33, 73728"); k("s_mul_i32 s36, s32, 12288"); k("s_add_u32 s35, s35, s36")
    k("s_lshl_b32 s36, s34, 10"); k("s_add_u32 s35, s35, s36")
    for i in range(3):
        k(f"s_add_u32 s36, s35, {i*4096}"); k(f"v_add_u32 v{2+i}, s36, v1")
        k(f"v_add_u32 v{5+i}, {9*4096}, v{2+i}")
    XA=16; DF=64; T=136; ID=10
    def dgen(t):
        L=[]
        L+=["s_mul_i32 s36, s10, 3","s_add_u32 s36, s36, s32","s_lshl_b32 s36, s36, 5","s_lshl_b32 s37, s11, 2","s_add_u32 s36, s36, s37",
            f"v_lshrrev_b32 v{t}, 2, v12",f"v_lshlrev_b32 v{t}, 3, v{t}",f"v_and_b32 v{t+1}, 3, v12",f"v_add3_u32 v{t}, v{t}, v{t+1}, s36",
            f"v_cvt_f32_u32 v{t}, v{t}",f"v_mul_f32 v{t}, {fh(-1.0/576)}, v{t}",
            f"v_lshlrev_b32 v{t+1}, 3, v13",f"v_cvt_f32_u32 v{t+1}, v{t+1}",f"v_mul_f32 v{t+1}, v{t}, v{t+1}"]
        for kp in range(9):
            for hq in range(2):
                f=t+2; c_=t+6; s_=t+10
                for q in range(4):
                    K=32*kp+4*hq+q
                    L.append(f"v_fmamk_f32 v{f+q}, v{t}, {fh(float(K))}, v{t+1}" if K else f"v_mov_b32 v{f+q}, v{t+1}")
                for q in range(4): L+= [f"v_cos_f32 v{c_+q}, v{f+q}", f"v_sin_f32 v{s_+q}, v{f+q}"]
                for d in range(2): L.append(f"v_cvt_pk_bf16_f32 v{DF+4*kp+2*hq+d}, v{c_+2*d}, v{c_+2*d+1}")
                for d in range(2): L.append(f"v_cvt_pk_bf16_f32 v{DF+36+4*kp+2*hq+d}, v{s_+2*d}, v{s_+2*d+1}")
        return L
    def gfrag(G):
        k("s_lshl_b32 s36, s11, 4"); k(f"v_add_u32 v{G+8}, s36, v12")
        k("s_and_b32 s36, s32, 1"); k("s_mul_i32 s36, s36, 0xbe800000")
        k(f"v_lshlrev_b32 v{G+9}, 2, v13")
        k(f"s_mov_b32 s37, {fh(1/32)}")
        for q in range(8): k(f"v_add_u32 v{G+q}, {16*(q//4)+q%4}, v{G+9}")
        for q in range(8): k(f"v_mul_u32_u24 v{G+q}, v{G+q}, v{G+8}")
        for q in range(8): k(f"v_cvt_f32_u32 v{G+q}, v{G+q}")
        k(f"v_mov_b32 v{G+9}, s36")
        for q in range(8): k(f"v_fma_f32 v{G+q}, s37, v{G+q}, v{G+9}")
        for q in range(8): k(f"v_cos_f32 v{G+q}, v{G+q}")
        for q in range(4): k(f"v_cvt_pk_bf16_f32 v{G+12+q}, v{G+2*q}, v{G+2*q+1}")
        k("s_and_b32 s36, s6, 3"); k("s_lshl_b32 s36, s36, 10"); k(f"v_add_u32 v{G+8}, s36, v1")
        k.lg(f"ds_write_b128 v{G+8}, {vr(G+12)} offset:{GFR}")
    if not first:
        for c in range(8): k(f"s_mov_b32 s{40+c}, {c*XSZ}")
        k("s_waitcnt lgkmcnt(0)")
        k.srd(20,4,8*XSZ,PP)
        lst=[(i,c,hf) for i in range(3) for c in range(8) for hf in range(2)]
        def pload(j):
            i,c,hf=lst[j]
            k.vm(f"buffer_load_dwordx4 {ar(4*(j%NP))}, v{2+3*hf+i}, s[20:23], s{40+c} offen",("U",j))
        for j in range(NP): pload(j)
        identity(k,ID,12,13,T)
        gfrag(T)
        D=dgen(T); npre=int(opt("dpre","90"))
        for x in D[:npre]: k(x)
        D=D[npre:]; per=(len(D)+39)//40
        for j,(i,c,hf) in enumerate(lst):
            k.wait(("U",j))
            for h in range(2):
                a=XA+16*i+8*hf+4*h
                k(f"{MF16} {vr(a)}, {vr(ID,2)}, {ar(4*(j%NP)+2*h,2)}, {'0' if c==0 else vr(a)}")
            if j+NP<len(lst): pload(j+NP)
            for x in D[:per]: k(x)
            D=D[per:]
        assert not D
    else:
        k("s_lshl_b32 s36, s11, 4"); k("v_add_u32 v8, s36, v12"); k("v_lshl_add_u32 v8, v8, 6, s9")
        k("v_mul_u32_u24 v8, 1152, v8")
        k("s_mul_i32 s36, s32, 192")
        k("v_lshl_add_u32 v9, v13, 4, s36")
        k("v_add_u32 v10, v8, v9")
        k("v_sub_u32 v11, v8, v9"); k(f"v_add_u32 v11, {1136-128}, v11")
        k("v_cmp_eq_u32 vcc, 0, v9")
        k(f"v_add_u32 v9, {128+16}, v11"); k("v_add_u32 v15, 576, v8"); k("v_cndmask_b32 v9, v9, v15, vcc")
        k("s_waitcnt lgkmcnt(0)")
        k.srd(20,52,XSZ)
        for i in range(3):
            k.vm(f"buffer_load_dwordx4 {vr(T+8*i)}, v10, s[20:23], 0 offen offset:{64*i}","U")
            k.vm(f"buffer_load_dwordx4 {vr(T+8*i+4)}, v11, s[20:23], 0 offen offset:{128-64*i}","U")
        k.vm(f"buffer_load_dword v{T+24}, v9, s[20:23], 0 offen","U")
        for i in (1,2): k.vm(f"buffer_load_dword v{T+24+i}, v11, s[20:23], 0 offen offset:{128-64*i+16}","U")
        gfrag(XA)
        for x in dgen(XA+16): k(x)
        k.wait("U"); k.wait_all_lg()
        for i in range(3):
            b=T+8*i; a=XA+16*i
            for d in range(4):
                k(f"v_lshlrev_b32 v{a+2*d}, 16, v{b+d}"); k(f"v_and_b32 v{a+2*d+1}, 0xffff0000, v{b+d}")
                k(f"v_lshlrev_b32 v{a+8+2*d}, 16, v{b+8-d if d else T+24+i}"); k(f"v_and_b32 v{a+8+2*d+1}, 0xffff0000, v{b+7-d}")
    mark(k)
    k(f"v_pk_add_f32 {vr(T,2)}, {vr(XA,2)}, {vr(XA+2,2)}"); k(f"v_pk_mul_f32 {vr(T+2,2)}, {vr(XA,2)}, {vr(XA,2)}")
    k(f"v_pk_add_f32 {vr(T+4,2)}, {vr(XA+4,2)}, {vr(XA+6,2)}"); k(f"v_pk_mul_f32 {vr(T+6,2)}, {vr(XA+2,2)}, {vr(XA+2,2)}")
    k(f"v_pk_fma_f32 {vr(T+2,2)}, {vr(XA+4,2)}, {vr(XA+4,2)}, {vr(T+2,2)}"); k(f"v_pk_fma_f32 {vr(T+6,2)}, {vr(XA+6,2)}, {vr(XA+6,2)}, {vr(T+6,2)}")
    for d in range(4,24):
        a=XA+2*d; o=4*(d%2)
        k(f"v_pk_add_f32 {vr(T+o,2)}, {vr(T+o,2)}, {vr(a,2)}"); k(f"v_pk_fma_f32 {vr(T+o+2,2)}, {vr(a,2)}, {vr(a,2)}, {vr(T+o+2,2)}")
    k(f"v_pk_add_f32 {vr(T,2)}, {vr(T,2)}, {vr(T+4,2)}"); k(f"v_pk_add_f32 {vr(T+2,2)}, {vr(T+2,2)}, {vr(T+6,2)}")
    k(f"v_add_f32 v{T}, v{T}, v{T+1}"); k(f"v_add_f32 v{T+1}, v{T+2}, v{T+3}")
    k("s_lshl_b32 s36, s11, 9"); k(f"s_add_u32 s36, s36, {STAT}"); k(f"v_lshl_add_u32 v8, v12, 5, s36")
    k(f"v_permlane32_swap_b32 v{T}, v{T+1}"); k(f"v_add_f32 v{T}, v{T}, v{T+1}"); k(f"v_mov_b32 v{T+1}, v{T}")
    k("v_lshrrev_b32 v9, 1, v13"); k("s_lshl_b32 s36, s32, 3"); k("v_lshl_add_u32 v9, v9, 2, s36"); k("v_add_u32 v9, v9, v8")
    k(f"v_permlane16_swap_b32 v{T}, v{T+1}"); k(f"v_add_f32 v{T}, v{T}, v{T+1}")
    k.lg(f"ds_write_b32 v9, v{T}")
    k.srd(20,4,XSZ,XP)
    LX=[k.label("x") for _ in range(4)]
    for a_ in range(3):
        k(f"{LX[a_]}:")
        if a_<2: k(f"s_cmp_lg_u32 s10, {a_}"); k(f"s_cbranch_scc1 {LX[a_+1]}")
        for d in range(8): k(f"v_cvt_pk_bf16_f32 v{T+16+d}, v{XA+16*a_+2*d}, v{XA+16*a_+2*d+1}")
        k(f"buffer_store_dwordx4 {vr(T+16)}, v{2+a_}, s[20:23], 0 offen{AM}"); k(f"buffer_store_dwordx4 {vr(T+20)}, v{5+a_}, s[20:23], 0 offen{AM}")
        if a_<2: k(f"s_branch {LX[3]}")
    k(f"{LX[3]}:")
    k.wait_all_lg(); k("s_barrier"); mark(k)
    k.lg(f"ds_read_b128 {vr(T)}, v8"); k.lg(f"ds_read_b64 {vr(T+12,2)}, v8 offset:16")
    k("s_lshl_b32 s36, s11, 6"); k(f"s_add_u32 s36, s36, {L288}"); k("v_lshl_add_u32 v15, v12, 2, s36")
    k("s_mul_i32 s36, s32, 6144"); k("s_lshl_b32 s37, s11, 10"); k("s_add_u32 s36, s36, s37"); k("v_add_u32 v9, s36, v1")
    k("s_cmp_eq_u32 s32, 0"); k("s_cselect_b32 s36, 0xffff, 0"); k("s_mov_b32 s37, 0")
    k.wait_all_lg()
    k(f"v_pk_add_f32 {vr(T,2)}, {vr(T,2)}, {vr(T+2,2)}"); k(f"v_pk_add_f32 {vr(T,2)}, {vr(T,2)}, {vr(T+12,2)}")
    RS=T+12; NM=T+13; M=T+14
    ln_scalars(k,T,T+1,T+2,RS,NM,M)
    k(f"v_fma_f32 v{T}, v{XA+8}, v{RS}, v{NM}")
    k(f"v_cndmask_b32 v{XA+8}, v{XA+8}, v{M}, s[36:37]")
    LK=k.label("k")
    k("s_cmp_lg_u32 s32, 0"); k(f"s_cbranch_scc1 {LK}")
    k("s_mov_b64 exec, 0xffff"); k(f"ds_write_b32 v15, v{T}"); k("s_mov_b64 exec, -1")
    k(f"{LK}:")
    k(f"v_add_f32 v{NM}, v{NM}, v{NM}")
    for i in range(3):
        a=XA+16*i; E=T+4*(i%2); O=T+16+4*i
        for d in range(4):
            lo=a+2*d; hi=a+8+2*d; t2=(T+28,T+8)[d%2]
            k(f"v_pk_add_f32 {vr(t2,2)}, {vr(lo,2)}, {vr(hi,2)}")
            k(f"v_pk_add_f32 {vr(t2+2,2)}, {vr(hi,2)}, {vr(lo,2)} neg_lo:[0,1] neg_hi:[0,1]")
            k(f"v_pk_fma_f32 {vr(t2,2)}, {vr(t2,2)}, {vr(RS,2)}, {vr(RS,2)} op_sel:[0,0,1] op_sel_hi:[1,0,1]")
            k(f"v_pk_mul_f32 {vr(t2+2,2)}, {vr(t2+2,2)}, {vr(RS,2)} op_sel_hi:[1,0]")
            k(f"v_cvt_pk_bf16_f32 v{E+d}, v{t2}, v{t2+1}"); k(f"v_cvt_pk_bf16_f32 v{O+d}, v{t2+2}, v{t2+3}")
        k.lg(f"ds_write_b128 v9, {vr(E)} offset:{EFR+i*2048}"); k.lg(f"ds_write_b128 v9, {vr(O)} offset:{OFR+i*2048}")
    k.srd(20,4,32*VCL,VP)
    k("s_mul_i32 s38, s10, 3"); k("s_add_u32 s38, s38, s32"); k("s_lshl_b32 s38, s38, 1"); k("s_add_u32 s38, s38, s11"); k("s_lshl_b32 s38, s38, 12")
    k("s_lshr_b32 s39, s9, 2"); k("s_lshl_b32 s39, s39, 8"); k("s_add_u32 s38, s38, s39")
    k("s_and_b32 s39, s9, 3"); k("s_lshl_b32 s39, s39, 2"); k("s_add_u32 s38, s38, s39")
    k(f"s_mov_b32 s39, {4*VCL}")
    k("v_lshl_add_u32 v2, v12, 4, s38"); k("v_mad_u32_u24 v2, v13, s39, v2"); k(f"v_add_u32 v3, {18*4096}, v2")
    for i in range(8): k(f"s_mov_b32 s{40+i}, {(16*(i//4)+i%4)*VCL}")
    k(f"v_lshlrev_b32 v8, 4, v13"); k("v_lshlrev_b32 v9, 31, v12")
    k("s_waitcnt lgkmcnt(0)"); k.lgdone=len(k.lgq); k("s_barrier"); mark(k)
    AC=XA; ALT=XA+16; BC=XA+20; BS=XA+24; GF=XA+28; RB=T; NB=8
    LSP=k.label("sp")
    k.lg(f"ds_read_b128 {vr(AC)}, v8 offset:{L288}","L"); k.lg(f"ds_read_b128 {vr(AC+4)}, v8 offset:{L288+64}","L")
    seq=[(typ,kp,rt) for kp in range(9) for rt in range(2) for typ in "EO"]
    def aread(j):
        typ,kp,rt=seq[j]
        k.lg(f"ds_read_b128 {vr(RB+4*(j%NB))}, v1 offset:{(EFR if typ=='E' else OFR)+(kp*2+rt)*1024}",("A",j))
    for j in range(NB): aread(j)
    for g_ in range(4): k.lg(f"ds_read_b128 {vr(GF+4*g_)}, v1 offset:{GFR+g_*1024}","G")
    k("s_or_b32 s38, s10, s6"); k("s_cmp_eq_u32 s38, 0"); k(f"s_cbranch_scc1 {LSP}")
    save=(list(k.lgq),k.lgdone,list(k.hist))
    nm0=getattr(k,"nmark",None)
    for sp in (False,True):
        if sp:
            k(f"{LSP}:"); k.lgq,k.lgdone,k.hist=list(save[0]),save[1],list(save[2])
            if nm0 is not None: k.nmark=nm0
            k("s_mov_b32 s36, 0x00010001"); k("s_mov_b32 s37, s36")
            k(f"v_mov_b32 v{ALT+1}, 0xbf803f80"); k(f"v_cndmask_b32 v{ALT}, 0, v{ALT+1}, s[36:37]")
            for i in range(1,4): k(f"v_mov_b32 v{ALT+i}, v{ALT}")
        k.wait(None,"L")
        for i in range(8):
            if sp: k(f"v_cndmask_b32 v{AC+8+i}, 0, v{AC+i}, s[36:37]")
            k(f"v_xor_b32 v{AC+i}, v9, v{AC+i}")
        for j,(typ,kp,rt) in enumerate(seq):
            k.wait(None,("A",j))
            A=vr(RB+4*(j%NB))
            if typ=="E":
                k(f"{MF} {vr(AC+4*rt)}, {A}, {vr(DF+4*kp)}, {vr(AC+4*rt)}")
                if sp: k(f"{MF} {vr(AC+8+4*rt)}, {A}, {vr(ALT)}, {vr(AC+8+4*rt)}")
            else:
                k(f"{MF} {vr(AC+8+4*rt)}, {A}, {vr(DF+36+4*kp)}, {vr(AC+8+4*rt) if (sp or kp>0) else '0'}")
            if j+NB<len(seq): aread(j+NB)
        mark(k)
        for d in range(4): k(f"v_cvt_pk_bf16_f32 v{BC+d}, v{AC+2*d}, v{AC+2*d+1}")
        for d in range(4): k(f"v_cvt_pk_bf16_f32 v{BS+d}, v{AC+8+2*d}, v{AC+8+2*d+1}")
        R=DF
        for u2 in range(2):
            cosM=vr(GF+4*u2); sinM=vr(GF+8+4*u2); b=R+16*u2
            k(f"{MF} {vr(b)}, {cosM}, {vr(BC)}, 0"); k(f"{MF} {vr(b+4)}, {sinM}, {vr(BC)}, 0")
            k(f"{MF} {vr(b+8)}, {sinM}, {vr(BS)}, 0"); k(f"{MF} {vr(b+12)}, {cosM}, {vr(BS)}, 0")
        if sp:
            k("v_cmp_lt_u32 vcc, 15, v14"); k("v_mov_b32 v10, 0x80000000"); k("v_cndmask_b32 v11, 0, v10, vcc")
        for u2 in range(2):
            for rho in range(4):
                if u2==1 and rho>0 and not sp: continue
                b=R+16*u2+rho; cc,sc,ss,cs=b,b+4,b+8,b+12; t=R+32+6*((u2*4+rho)%4)
                k(f"v_sub_f32 v{t}, v{cc}, v{ss}"); k(f"v_add_f32 v{t+1}, v{sc}, v{cs}")
                k(f"v_add_f32 v{t+2}, v{cc}, v{ss}"); k(f"v_sub_f32 v{t+3}, v{sc}, v{cs}")
                if sp:
                    k(f"v_cndmask_b32 v{t}, v{t}, v{cc}, s[36:37]"); k(f"v_cndmask_b32 v{t+1}, v{t+1}, v{sc}, s[36:37]")
                    k(f"v_cndmask_b32 v{t+2}, v{t+2}, v{cs}, s[36:37]"); k(f"v_cndmask_b32 v{t+3}, v{t+3}, v{ss}, s[36:37]")
                k(f"v_cvt_pk_bf16_f32 v{t+4}, v{t}, v{t+1}"); k(f"v_cvt_pk_bf16_f32 v{t+5}, v{t+2}, v{t+3}")
                if sp and u2==1:
                    sg=11 if rho==0 else 10
                    k(f"v_xor_b32 v{t+4}, v{sg}, v{t+4}"); k(f"v_xor_b32 v{t+5}, v{sg}, v{t+5}")
                if u2==1 and not sp: k("s_mov_b64 exec, 0xffff")
                k(f"buffer_store_dword v{t+4}, v2, s[20:23], s{40+4*u2+rho} offen"); k(f"buffer_store_dword v{t+5}, v3, s[20:23], s{40+4*u2+rho} offen")
                if u2==1 and not sp: k("s_mov_b64 exec, -1")
        mark(k)
        if not sp or first: k(f"s_branch {name}_fin")
    if first:
        k(f"{name}_pack:"); k.hist=[]; k.lgq=[]; k.lgdone=0; k.vmq=[]; k.vmdone=0
        PR=16; OUT=64; t=PR+8; AD=PR+32
        k("s_lshl_b32 s64, s2, 2"); k("s_add_u32 s64, s64, s6"); k("s_sub_u32 s64, s64, 6")
        k("s_lshl_b32 s65, s6, 6"); k("s_add_u32 s65, s65, s2"); k("s_add_u32 s65, s65, 576")
        k("s_mul_i32 s70, s6, 8256"); k(f"s_sub_u32 s66, s70, {6*8256-PKL}")
        k("s_cmp_ge_u32 s2, 192"); k("s_cselect_b32 s64, s65, s64"); k("s_cselect_b32 s70, s70, s66")
        k("s_cmp_ge_u32 s64, 1296"); k(f"s_cbranch_scc1 {name}_done")
        k("v_lshrrev_b32 v9, 2, v12"); k("v_and_b32 v10, 3, v12")
        LW2=k.label("w2"); LUP=k.label("w2up"); LTR=k.label("tr"); LST=k.label("st")
        def dest_offsets(vK, vKs, vKsA, perlane):
            t=PR
            k(f"v_and_b32 v{t}, 3, v{vK}")
            k(f"v_lshrrev_b32 v{t+1}, 2, v{vK}")
            k(f"v_lshlrev_b32 v{t+2}, 2, v{vKsA}"); k(f"v_lshl_add_u32 v{t+2}, v{t}, 1, v{t+2}")
            k(f"v_mul_u32_u24 v{t+3}, 3, v{vKs}"); k(f"v_add_u32 v{t+3}, 72, v{t+3}")
            k(f"v_lshlrev_b32 v{t+4}, 1, v{vKs}"); k(f"v_add_u32 v{t+4}, 126, v{t+4}")
            k(f"v_cmp_eq_u32 vcc, 2, v{t}"); k(f"v_cndmask_b32 v{t+2}, v{t+2}, v{t+3}, vcc")
            k(f"v_cmp_eq_u32 vcc, 3, v{t}"); k(f"v_cndmask_b32 v{t+2}, v{t+2}, v{t+4}, vcc")
            k(f"v_add_u32 v{t+3}, 2, v{t+3}"); k(f"v_lshlrev_b32 v{t}, 1, v{t}")
            k(f"v_cmp_le_u32 vcc, 16, v{vK}")
            k(f"v_cndmask_b32 v{t+2}, v{t+2}, v{t+3}, vcc"); k(f"v_cndmask_b32 v{t+1}, v{t+1}, v{t}, vcc")
            k(f"v_mov_b32 v{t+3}, 1024"); k(f"v_mov_b32 v{t+4}, {324*1024}"); k(f"v_cndmask_b32 v{t+3}, v{t+3}, v{t+4}, vcc")
            k(f"v_mul_u32_u24 v{t+1}, 324, v{t+1}"); k(f"v_add3_u32 v{t+2}, v{t+2}, v{t+1}, v{perlane}")
            k(f"v_lshlrev_b32 v15, 10, v{t+2}"); k(f"v_add_u32 v11, v15, v{t+3}")
        def after_loads():
            for p in range(4):
                k(f"v_readlane_b32 s{40+2*p}, v15, {4*p}"); k(f"v_readlane_b32 s{41+2*p}, v11, {4*p}")
        k("s_cmp_ge_u32 s64, 648"); k(f"s_cbranch_scc1 {LW2}")
        sdivmod(k,7,64,64,81,647)
        sdivmod(k,65,66,64,9,80)
        k(f"v_and_b32 v{t}, 1, v9"); k("s_lshl_b32 s65, s65, 1"); k(f"v_add_u32 v{t}, s65, v{t}")
        k(f"v_lshrrev_b32 v{t+1}, 1, v9"); k("s_lshl_b32 s66, s66, 1"); k(f"v_add_u32 v{t+1}, s66, v{t+1}")
        k("s_mul_i32 s67, s7, 1152")
        k(f"v_lshl_add_u32 v{t+2}, v{t}, 6, s67"); k(f"v_lshl_add_u32 v8, v10, 4, v{t+2}")
        k(f"v_lshlrev_b32 v{t+3}, 5, v{t+1}"); k(f"v_lshl_add_u32 v2, v13, 3, v{t+3}")
        k("s_movk_i32 s67, 9216")
        for q in range(8):
            k(f"v_add_u32 v{AD+q}, {q}, v2"); k(f"v_sub_u32 v3, 864, v{AD+q}")
            k(f"v_cmp_lt_u32 vcc, 288, v{AD+q}"); k(f"v_cndmask_b32 v{AD+q}, v{AD+q}, v3, vcc")
            k(f"v_mad_u32_u24 v{AD+q}, v{AD+q}, s67, v8")
        k("s_mul_i32 s67, s7, 1296"); k(f"v_mov_b32 v{t+2}, s67")
        dest_offsets(t,t+1,t+1,t+2)
        k("s_waitcnt lgkmcnt(0)")
        k.srd(24,60,5308416)
        for q in range(8): k(f"buffer_load_dwordx4 {vr(PR+4*q)}, v{AD+q}, s[24:27], 0 offen{PM}")
        k(f"s_branch {LTR}")
        k(f"{LW2}:"); k.hist=[]
        k("s_sub_u32 s64, s64, 648")
        sdivmod(k,68,64,64,162,647)
        sdivmod(k,66,67,64,18,161)
        k("s_lshl_b32 s66, s66, 2"); k(f"v_add_u32 v{t+1}, s66, v9")
        k("s_mul_i32 s69, s68, 1152")
        k(f"v_lshlrev_b32 v8, 5, v{t+1}"); k("v_lshl_add_u32 v8, v13, 3, v8"); k("v_add_u32 v8, s69, v8")
        k("v_mul_u32_u24 v8, 1152, v8")
        k("s_mul_i32 s68, s68, 2592"); k("s_add_u32 s68, s68, 162"); k("s_add_u32 s69, s68, 1296")
        k(f"v_mov_b32 v{t+2}, s68"); k(f"v_mov_b32 v{t+3}, s69"); k(f"v_subrev_u32 v{t+4}, 18, v{t+1}")
        k(f"v_cmp_le_u32 vcc, 18, v{t+1}")
        k(f"v_cndmask_b32 v{t+2}, v{t+2}, v{t+3}, vcc"); k(f"v_cndmask_b32 v{t+1}, v{t+1}, v{t+4}, vcc")
        k(f"v_lshrrev_b32 v{t+3}, 2, v{t+1}"); k(f"v_sub_u32 v{t+4}, v{t+1}, v{t+3}"); k(f"v_add_u32 v{t+3}, 14, v{t+3}")
        k(f"v_and_b32 v{t+5}, 3, v{t+1}"); k(f"v_cmp_eq_u32 vcc, 3, v{t+5}"); k(f"v_cndmask_b32 v{t+3}, v{t+4}, v{t+3}, vcc")
        k(f"v_mov_b32 v{t}, s67")
        dest_offsets(t,t+1,t+3,t+2)
        k("s_waitcnt lgkmcnt(0)")
        k.srd(24,62,5308416)
        k("s_cmp_ge_u32 s67, 9"); k(f"s_cbranch_scc1 {LUP}")
        k("s_lshl_b32 s67, s67, 6"); k("v_lshl_add_u32 v2, v10, 4, s67"); k("v_add_u32 v2, v8, v2")
        k(f"v_add_u32 v3, {3*1152}, v2"); k(f"v_add_u32 v4, {6*1152}, v2")
        for q in range(8): k(f"buffer_load_dwordx4 {vr(PR+4*q)}, v{2+q//3}, s[24:27], 0 offen offset:{(q%3)*1152}{PM}")
        def stage(src):
            k("v_mul_u32_u24 v8, 2064, v9"); k("v_lshl_add_u32 v8, v13, 8, v8"); k("v_lshl_add_u32 v8, v10, 6, v8")
            k("v_add_u32 v8, s70, v8"); k("v_add_u32 v9, s70, v1")
            after_loads()
            k.srd(20,4,32*331776,WP)
            k("s_mov_b32 s36, 0x05040100"); k("s_mov_b32 s37, 0x07060302")
            k("s_barrier"); k("s_barrier")
            k("s_waitcnt vmcnt(0)")
            for n in range(8):
                o=OUT+4*n
                for qq in range(4):
                    r1,h1=src(2*qq+1,n); r0,h0=src(2*qq,n); assert h0==h1
                    k(f"v_perm_b32 v{o+qq}, v{r1}, v{r0}, s{36+h0}")
                k(f"ds_write_b128 v8, {vr(o)} offset:{(n//4)*1024+(n%4)*16}")
        k(f"{LTR}:"); k.hist=[]
        stage(lambda q,n:(PR+4*q+n//2,n%2))
        k(f"s_branch {LST}")
        k(f"{LUP}:"); k.hist=[]
        k("s_sub_u32 s67, s67, 9"); k("s_lshl_b32 s67, s67, 6"); k("v_lshl_add_u32 v2, v10, 4, s67")
        k("v_cmp_eq_u32 vcc, 0, v2")
        k(f"v_sub_u32 v2, 1136, v2"); k(f"v_add_u32 v5, 16, v2"); k(f"v_mov_b32 v{t}, 576"); k(f"v_cndmask_b32 v5, v5, v{t}, vcc")
        k(f"v_add_u32 v2, v8, v2"); k(f"v_add_u32 v5, v8, v5")
        for j in (1,2):
            k(f"v_add_u32 v{2+j}, {3*1152*j}, v2"); k(f"v_add_u32 v{5+j}, {3*1152*j}, v5")
        for q in range(8):
            k(f"buffer_load_dwordx4 {vr(PR+4*q)}, v{2+q//3}, s[24:27], 0 offen offset:{(q%3)*1152}{PM}")
            k(f"buffer_load_dword v{PR+32+q}, v{5+q//3}, s[24:27], 0 offen offset:{(q%3)*1152}{PM}")
        stage(lambda q,n:((PR+32+q,0) if n==0 else (PR+4*q+(8-n)//2,n%2)))
        k(f"{LST}:"); k.hist=[]
        k("s_waitcnt lgkmcnt(4)")
        for p in range(4):
            for h in range(2): k(f"ds_read_b128 {vr(PR+8*p+4*h)}, v9 offset:{p*2064+h*1024}")
        for j in range(8):
            k(f"s_waitcnt lgkmcnt({7-j})")
            k(f"buffer_store_dwordx4 {vr(PR+4*j)}, v1, s[20:23], s{40+j} offen{mod('wsm')}")
    k(f"{name}_fin:")
    if STAMPS: stamp_end(k,kidx,4,2)
    k(f"{name}_done:"); k("s_endpgm")
    return k

def gen_K7(name,kidx):
    k=Kern(name,256,576,0,vgpr=64)
    k("s_cmp_ge_u32 s2, 256"); k(f"s_cbranch_scc1 {name}_done")
    if STAMPS: stamp_begin(k)
    k("s_load_dwordx2 s[4:5], s[0:1], 80"); k("s_load_dwordx2 s[6:7], s[0:1], 64")
    k("v_lshrrev_b32 v2, 6, v0"); k("v_and_b32 v14, 63, v0"); k("v_readfirstlane_b32 s8, v2")
    k("v_lshlrev_b32 v1, 4, v14"); k("v_and_b32 v12, 15, v14"); k("v_lshrrev_b32 v13, 4, v14")
    k("s_lshr_b32 s9, s2, 3"); k("s_bfe_u32 s10, s2, 0x20001"); k("s_and_b32 s11, s2, 1")
    k("s_mul_i32 s32, s11, 9"); k("s_add_u32 s32, s32, s8")
    k("s_mul_i32 s33, s9, 73728"); k("s_lshl_b32 s34, s32, 12"); k("s_add_u32 s33, s33, s34")
    k("s_lshl_b32 s34, s10, 10"); k("s_add_u32 s33, s33, s34"); k("v_add_u32 v2, s33, v1")
    for c in range(8): k(f"s_mov_b32 s{40+c}, {c*XSZ}")
    k("s_waitcnt lgkmcnt(0)")
    mark(k)
    k.srd(12,4,8*XSZ,PP)
    for c in range(8): k.vm(f"buffer_load_dwordx4 {vr(16+4*c)}, v2, s[12:15], s{40+c} offen",c)
    k.srd(16,6,XSZ)
    k("s_and_b32 s33, s10, 1"); k("s_lshl_b32 s33, s33, 10"); k("s_add_u32 s33, s33, s9")
    k("s_and_b32 s34, s10, 2"); k("s_lshl_b32 s34, s34, 4"); k("s_add_u32 s33, s33, s34")
    k("v_lshl_add_u32 v3, v12, 6, s33"); k("v_mul_u32_u24 v3, 1152, v3")
    k("s_lshl_b32 s33, s8, 6"); k("v_lshl_add_u32 v4, v13, 4, s33")
    A=48
    for c in range(8):
        k.wait(c)
        for d in range(4):
            x=16+4*c+d; a=A+2*d
            if c==0: k(f"v_lshlrev_b32 v{a}, 16, v{x}"); k(f"v_and_b32 v{a+1}, 0xffff0000, v{x}")
            else:
                T=56+2*d
                k(f"v_lshlrev_b32 v{T}, 16, v{x}"); k(f"v_and_b32 v{T+1}, 0xffff0000, v{x}")
                k(f"v_pk_add_f32 {vr(a,2)}, {vr(a,2)}, {vr(T,2)}")
    mark(k)
    LU=k.label("up")
    k("s_cmp_eq_u32 s11, 1"); k(f"s_cbranch_scc1 {LU}")
    for d in range(4): k(f"v_cvt_pk_bf16_f32 v{16+d}, v{A+2*d}, v{A+2*d+1}")
    k("v_add_u32 v3, v3, v4"); k("buffer_store_dwordx4 v[16:19], v3, s[16:19], 0 offen")
    k(f"s_branch {name}_fin")
    k(f"{LU}:")
    k(f"v_cvt_pk_bf16_f32 v16, v{A+6}, v{A+5}"); k(f"v_cvt_pk_bf16_f32 v17, v{A+4}, v{A+3}"); k(f"v_cvt_pk_bf16_f32 v18, v{A+2}, v{A+1}")
    k(f"v_cvt_pk_bf16_f32 v19, v{A+7}, v{A}")
    k("v_cmp_eq_u32 vcc, 0, v4")
    k("v_sub_u32 v5, v3, v4"); k("v_add_u32 v5, 1138, v5")
    k("v_add_u32 v6, 14, v5"); k("v_add_u32 v7, 576, v3"); k("v_cndmask_b32 v6, v6, v7, vcc")
    k("buffer_store_dwordx3 v[16:18], v5, s[16:19], 0 offen offset:2")
    k("buffer_store_short v19, v5, s[16:19], 0 offen")
    k("buffer_store_short_d16_hi v19, v6, s[16:19], 0 offen")
    k(f"{name}_fin:")
    if STAMPS: stamp_end(k,kidx,4,2)
    k(f"{name}_done:"); k("s_endpgm")
    return k

if __name__=="__main__":
    out=[a for a in sys.argv[1:] if not a.startswith("--")][0]
    k1=gen_KA("ka1_kernel",0,True); kf=gen_KF("kf_kernel",1); ka=gen_KA("ka2_kernel",2,False); k7=gen_K7("k7_kernel",4)
    kf2=gen_KF("kf2_kernel",3) if STAMPS else kf
    L=[k1,kf,ka,kf2,k7]
    open(out,"w").write(build(L,L))
    for k in (k1,kf,ka,k7): print(k.name,"lines",len(k.lines),"nops",k.nops)
    if "--v" in sys.argv:
        for k in (k1,kf,ka):
            for x in k.noplog: print(k.name,x)
```
